```python
import torch

def _softmax(x, axis=-1):
    return torch.softmax(x, dim=axis)
def _gelu(x):
    return torch.nn.functional.gelu(x, approximate="tanh")
def _silu(x):
    return torch.nn.functional.silu(x)
def _sigmoid(x):
    return torch.sigmoid(x)
def _layernorm(x, axis=-1, eps=1e-5):
    m = x.mean(dim=axis, keepdim=True)
    v = x.var(dim=axis, keepdim=True, unbiased=False)
    return (x - m) / torch.sqrt(v + eps)
def _scatter_add(tgt, idx, src, axis=0):
    return tgt.clone().index_add_(axis, idx, src)
def _segment_sum(src, seg, n):
    out = torch.zeros((n,) + src.shape[1:], dtype=src.dtype)
    return out.index_add_(0, seg, src)
def _pad(x, pw):
    flat = tuple(v for pair in reversed(pw) for v in pair)
    return torch.nn.functional.pad(x, flat)

kernel_name = 'interleave_layers__gqa_block_cached__glu_gated_glu__decode'

def setup_inputs():

    _w = (lambda a: (lambda t: t.to(torch.bfloat16) if t.is_floating_point() else t)(torch.as_tensor(a)))
    def _A_setup():
        B, Sq, D = 8, 1, 512
        Hq, Hkv, Sk, Dh = 32, 32, 4096, 128
        assert Hq % Hkv == 0, (Hq, Hkv)
        return {
            "x": _w((lambda *s: torch.randn(*s, dtype=torch.bfloat16) * 0.05)(B, Sq, D)),
            "k_cache": _w((lambda *s: torch.randn(*s, dtype=torch.bfloat16) * 1.6)(B, Hkv, Sk, Dh)),
            "v_cache": _w((lambda *s: torch.randn(*s, dtype=torch.bfloat16) * 1.6)(B, Hkv, Sk, Dh)),
            "wq": _w((lambda *s: torch.randn(*s, dtype=torch.bfloat16) * 1.6)(D, Hq * Dh) * (D ** -0.5)),
            "wo": _w((lambda *s: torch.randn(*s, dtype=torch.bfloat16) * 1.6)(Hq * Dh, D) * ((Hq * Dh) ** -0.5)),
        }
    _A_in = _A_setup()

    def _B_setup():
        B, S, D, F = 8, 1, 512, 1376
        return {
            "x": _w((lambda *s: torch.randn(*s, dtype=torch.bfloat16) * 0.05)(B, S, D)),
            "w_gate": _w((lambda *s: torch.randn(*s, dtype=torch.bfloat16) * 0.05)(D, F)),
            "w_up": _w((lambda *s: torch.randn(*s, dtype=torch.bfloat16) * 0.05)(D, F)),
            "w_down": _w((lambda *s: torch.randn(*s, dtype=torch.bfloat16) * 0.05)(F, D)),
        }
    _B_in = _B_setup()

    return {
        "A_x": _A_in["x"],
        "A_k_cache": _A_in["k_cache"],
        "A_v_cache": _A_in["v_cache"],
        "A_wq": _A_in["wq"],
        "A_wo": _A_in["wo"],
        "B_x": _B_in["x"],
        "B_w_gate": _B_in["w_gate"],
        "B_w_up": _B_in["w_up"],
        "B_w_down": _B_in["w_down"],
    }

def reference(A_x, A_k_cache, A_v_cache, A_wq, A_wo, B_x, B_w_gate, B_w_up, B_w_down):
    def _A_ref(x, k_cache, v_cache, wq, wo):
        B, Sq, D = x.shape
        Hq, Dh = 32, 128
        Hkv = k_cache.shape[1]
        rep = Hq // Hkv
        q = (lambda x, *d: x.permute(*d))((x @ wq).reshape(B, Sq, Hq, Dh), 0, 2, 1, 3)
        k = (lambda x, n, axis: torch.repeat_interleave(x, n, dim=axis))(k_cache, rep, axis=1)
        v = (lambda x, n, axis: torch.repeat_interleave(x, n, dim=axis))(v_cache, rep, axis=1)
        scores = torch.einsum("bhqd,bhkd->bhqk", q, k) * (Dh ** -0.5)
        p = _softmax(scores, axis=-1)
        o = torch.einsum("bhqk,bhkd->bhqd", p, v)
        return (lambda x, *d: x.permute(*d))(o, 0, 2, 1, 3).reshape(B, Sq, Hq * Dh) @ wo

    def _B_ref(x, w_gate, w_up, w_down):
        g = torch.einsum("bsd,df->bsf", x, w_gate)
        u = torch.einsum("bsd,df->bsf", x, w_up)
        h = _sigmoid(g) * u
        return torch.einsum("bsf,fd->bsd", h, w_down)

    x = A_x
    x = x + _A_ref(_layernorm(x, axis=-1), A_k_cache, A_v_cache, A_wq, A_wo)
    x = x + _B_ref(_layernorm(x, axis=-1), B_w_gate, B_w_up, B_w_down)
    x = x + _A_ref(_layernorm(x, axis=-1), A_k_cache, A_v_cache, A_wq, A_wo)
    x = x + _B_ref(_layernorm(x, axis=-1), B_w_gate, B_w_up, B_w_down)
    return x
```

```python
import re

TRANS = ('v_exp_f32', 'v_log_f32', 'v_rcp_f32', 'v_rsq_f32', 'v_sqrt_f32', 'v_sin_f32', 'v_cos_f32')
_reg = re.compile(r'^(-|\|)?(abs\()?([vas])(?:(\d+)|\[(\d+):(\d+)\])\)?\|?$')

def regs_of(op):
    op = op.strip()
    if op in ('vcc', 'exec', 'm0', 'scc'):
        return {op}
    if op in ('vcc_lo', 'vcc_hi'): return {'vcc'}
    if op in ('exec_lo', 'exec_hi'): return {'exec'}
    m = _reg.match(op)
    if not m:
        return set()
    k = m.group(3)
    if m.group(4) is not None:
        return {(k, int(m.group(4)))}
    return {(k, i) for i in range(int(m.group(5)), int(m.group(6)) + 1)}

def isv(r): return isinstance(r, tuple) and r[0] in 'va'
def iss(r): return (isinstance(r, tuple) and r[0] == 's') or r == 'vcc'

class Ins:
    __slots__ = ('kind', 'w', 'r', 'states', 'mn', 'dpp', 'srcc', 'wide', 'data')

class Asm:
    def __init__(self):
        self.lines = []
        self.hist = []
        self.nins = 0
        self.nnop = 0

    def raw(self, s):
        self.lines.append(s)

    def comment(self, s):
        self.lines.append('  ; ' + s)

    def label(self, name, safe=True):
        self.lines.append(name + ':')

    def fence(self):
        self('s_nop 7')
        self.hist = []

    def _classify(self, text):
        t = text.strip()
        parts = t.split(None, 1)
        mn = parts[0]
        rest = parts[1] if len(parts) > 1 else ''
        ops = []
        depth = 0; cur = ''
        for ch in rest:
            if ch in '[(': depth += 1
            if ch in '])': depth -= 1
            if ch == ',' and depth == 0:
                ops.append(cur.strip()); cur = ''
            else:
                cur += ch
        if cur.strip(): ops.append(cur.strip())
        mods = ''
        if ops:
            lp = ops[-1].split(None, 1)
            ops[-1] = lp[0]
            if len(lp) > 1: mods = lp[1]
        I = Ins(); I.mn = mn; I.states = 1; I.dpp = False; I.srcc = set(); I.wide = False; I.data = set()
        R = [regs_of(o) for o in ops]
        allr = set().union(*R) if R else set()
        if mn == 's_nop':
            I.kind = 'nop'; I.w = set(); I.r = set(); I.states = int(ops[0], 0) + 1
        elif mn.startswith('v_mfma'):
            I.kind = 'mfma'; I.w = R[0]; I.r = R[1] | R[2] | R[3]; I.srcc = R[3]
        elif mn.startswith('v_'):
            I.kind = 'trans' if any(mn.startswith(x) for x in TRANS) else 'valu'
            I.dpp = mn.endswith('_dpp')
            if mn.startswith('v_permlane'):
                I.w = R[0] | R[1]; I.r = R[0] | R[1]
            else:
                I.w = set(R[0]); I.r = set().union(*R[1:]) if len(R) > 1 else set()
                if mn.startswith(('v_fmac', 'v_dot2c')) or I.dpp: I.r |= R[0]
                if mn.startswith(('v_add_co', 'v_sub_co', 'v_addc_co')): I.w |= R[1]
                if mn.startswith('v_cmpx'): I.w |= {'exec'}
        elif mn.startswith(('buffer_', 'global_')):
            I.kind = 'vmem'
            lds = re.search(r'\blds\b', mods) is not None
            if 'load' in mn and not lds:
                I.w = R[0]; I.r = set().union(*R[1:])
            elif lds:
                I.w = set(); I.r = allr | {'m0'}
            else:
                I.w = set(); I.r = allr
                if 'atomic' in mn and 'sc0' in mods: I.w = R[0]
                if mn.endswith(('x3', 'x4')):
                    I.wide = True
                    I.data = R[0] if mn.startswith('buffer_') else R[1]
        elif mn.startswith('ds_'):
            I.kind = 'ds'
            if 'read' in mn or 'rtn' in mn or 'permute' in mn or 'swizzle' in mn:
                I.w = R[0]; I.r = set().union(*R[1:])
            else:
                I.w = set(); I.r = allr
            if 'addtid' in mn: I.r = I.r | {'m0'}
        elif mn.startswith('s_'):
            I.kind = 'salu'
            if mn.startswith(('s_cmp', 's_cbranch', 's_branch', 's_waitcnt', 's_barrier', 's_endpgm', 's_sleep', 's_setprio', 's_setpc', 's_bitcmp')):
                I.w = set(); I.r = allr
            else:
                I.w = set(R[0]) if R else set(); I.r = set().union(*R[1:]) if len(R) > 1 else set()
                if 'saveexec' in mn: I.w |= {'exec'}
        else:
            raise ValueError('unknown instr ' + text)
        return I

    def _need(self, I):
        need = 0
        dist = 0
        for P in reversed(self.hist):
            req = 0
            pv = P.kind in ('valu', 'trans')
            if pv:
                wv = {r for r in P.w if isv(r)}
                ws = {r for r in P.w if iss(r)}
                if I.kind == 'mfma' and (wv & I.r): req = max(req, 2)
                if I.kind in ('valu', 'trans'):
                    if I.dpp and (wv & I.r): req = max(req, 2)
                    if I.mn.startswith('v_permlane') and (wv & I.r): req = max(req, 2)
                    if I.mn.startswith(('v_readlane', 'v_readfirstlane')) and (wv & I.r): req = max(req, 1)
                    if P.kind == 'trans' and I.kind != 'trans' and (wv & I.r): req = max(req, 1)
                    if P.kind == 'trans' and I.kind == 'trans' and (wv & I.r): req = max(req, 1)
                    if ws & I.r:
                        req = max(req, 4 if I.mn.startswith(('v_readlane', 'v_writelane')) else 2)
                    if 'exec' in P.w: req = max(req, 5)
                if I.kind == 'mfma' and 'exec' in P.w: req = max(req, 4)
                if I.kind == 'vmem' and (ws & I.r): req = max(req, 5)
                if P.kind == 'trans' and I.kind in ('vmem', 'ds') and (wv & I.r): req = max(req, 1)
            if P.kind == 'mfma':
                if I.kind == 'mfma':
                    if P.w & (I.r - I.srcc): req = max(req, 8)
                    if P.w & I.srcc and P.w != I.srcc: req = max(req, 6)
                    if (P.w & I.w) and P.w != I.srcc: req = max(req, 8)
                elif I.kind in ('valu', 'trans', 'vmem', 'ds'):
                    if P.w & (I.r | I.w): req = max(req, 8)
                    if I.kind in ('valu', 'trans') and (P.srcc & I.w): req = max(req, 3)
            if P.kind == 'vmem' and P.wide and (P.data & I.w):
                req = max(req, 2)
            if P.kind == 'salu' and 'm0' in P.w and 'm0' in I.r and I.kind in ('vmem', 'ds'):
                req = max(req, 1)
            if req - dist > need: need = req - dist
            dist += P.states
            if dist > 12: break
        return need

    def __call__(self, text):
        I = self._classify(text)
        n = self._need(I)
        if n > 0:
            self.lines.append(f'  s_nop {n-1}')
            N = self._classify(f's_nop {n-1}')
            self.hist.append(N); self.nnop += 1
        self.lines.append('  ' + text.strip())
        self.hist.append(I)
        self.hist = self.hist[-16:]
        self.nins += 1

    def text(self):
        return '\n'.join(self.lines) + '\n'

def vr(base, n=1, k='v'):
    return f'{k}{base}' if n == 1 else f'{k}[{base}:{base+n-1}]'
```

```python
from asmlib import vr
import gen as G

def chain(a, env):
    f32 = G.f32; DPPF = G.DPPF
    L = env['L']; srd = env['srd']; stamp = env['stamp']; spin_dec = env['spin_dec']
    S_WS = env['S_WS']; S_DBG = env['S_DBG']
    sX, sT, sW, sVAL, sLOCAL, sHI = (env[k] for k in ('sX', 'sT', 'sW', 'sVAL', 'sLOCAL', 'sHI'))
    force_nonlocal = env['force_nonlocal']
    vm = G.VM(a)
    WS = f's[{S_WS}:{S_WS+3}]'

    S_WQ, S_G, S_U, S_XI, S_WO, S_WD, S_OUT = 4, 8, 12, 16, 40, 44, 48
    sS, sJA, sJB, sP2W, sP2R, sHW, sQW, sDES, sOUTO = 28, 29, 30, 31, 34, 35, 36, 37, 38
    sM2 = 52
    sM1 = 54
    vBF, vL16, vL8, vST, vH, vHS, vQS, vXR, vXW, vOW, vML, vSTW, vSTR = range(1, 14)
    vTa, vTb = 14, 15
    vX = 16; vD = 20; vR = 28; vTc = 30; vTd = 31; vB = 32
    XR = 0; XB = 18432; XS = 1056; STATS = 26880; STG = 32768
    OB = XB; XB1 = XB + 2*XS; XB2 = XB + 4*XS
    def wq(t, c): return vr(4*(2*c + t), 4, 'a')
    def wo(t, c): return vr(128 + 4*(2*c + t), 4, 'a')
    def wg(c): return vr(80 + 4*c, 4)
    def wu(c): return vr(144 + 4*c, 4)
    def wd(t, c): return vr(208 + 4*(2*c + t), 4)

    def exec_set(lo, hi):
        a(f's_mov_b32 exec_lo, {lo}'); a(f's_mov_b32 exec_hi, {hi}')
    def exec_all(): a('s_mov_b64 exec, -1')

    a.label('Lchain')
    a('s_load_dwordx2 s[72:73], s[0:1], 0')
    a('s_load_dwordx4 s[76:79], s[0:1], 24')
    a('s_load_dwordx8 s[80:87], s[0:1], 48')
    a(f'v_lshlrev_b32 v{vL16}, 4, v0')
    a(f'v_lshlrev_b32 v{vL8}, 3, v0')
    a(f'v_lshrrev_b32 v{vTa}, 4, v0')
    a(f'v_and_b32 v{vTb}, 15, v0')
    a(f's_lshl_b32 s57, s{sX}, 2')
    a(f's_add_u32 s57, s57, s{sT}')
    a('s_waitcnt lgkmcnt(0)')
    srd(S_WS, 70, 71, hex(G.WS_BYTES)); srd(S_XI, 72, 73, '8192')
    srd(S_WQ, 76, 77, '0x400000')
    a(f'v_lshlrev_b32 v{vTc}, 5, v0')
    a(f's_lshl_b32 s58, s{sW}, 11')
    a(f'buffer_load_dwordx4 {vr(vB,4)}, v{vTc}, s[{S_XI}:{S_XI+3}], s58 offen'); vm.issue('x')
    a(f'buffer_load_dwordx4 {vr(vB+4,4)}, v{vTc}, s[{S_XI}:{S_XI+3}], s58 offen offset:16'); vm.issue('x')
    for r in range(4): a(f'v_mov_b32 v{vD+r}, -1')
    a(f's_lshl_b32 s58, s{sT}, 13'); a(f's_lshl_b32 s59, s{sX}, 10')
    a(f's_add_u32 s{sP2W}, s58, s59'); a(f's_add_u32 s{sP2W}, s{sP2W}, {G.P2B}')
    a(f's_lshl_b32 s58, s{sW}, 15'); a(f's_add_u32 s58, s58, s{sP2W}')
    for k in range(5):
        a(f'buffer_store_dwordx4 {vr(vD,4)}, v{vL16}, {WS}, s58 offen sc1'); vm.issue('init')
        if k < 4: a('s_add_u32 s58, s58, 0x20000')
    a(f's_add_u32 s{sHW}, s59, {G.HB}')
    a(f's_lshl_b32 s58, s{sT}, 2'); a(f's_add_u32 s58, s58, s{sW}'); a('s_lshl_b32 s58, s58, 13')
    a(f's_add_u32 s58, s58, s{sHW}')
    a(f'buffer_store_dwordx4 {vr(vD,4)}, v{vL16}, {WS}, s58 offen sc1'); vm.issue('init')
    a(f's_lshl_b32 s{sQW}, s57, 8'); a(f's_add_u32 s{sQW}, s{sQW}, {G.QB}')
    a(f'v_lshlrev_b32 v{vTc}, 13, v{vTa}')
    a(f'v_lshl_add_u32 v{vTc}, v{vTb}, 4, v{vTc}')
    a(f's_lshl_b32 s58, s{sW}, 15'); a(f's_add_u32 s58, s58, s{sQW}')
    a(f'buffer_store_dwordx4 {vr(vD,4)}, v{vTc}, {WS}, s58 offen sc1'); vm.issue('init')

    vCB = 64
    vWA = 65; vWB = 66; vWT = 67; vTR0 = 68; vTR1 = 69; vGU = 70; vTA0 = 71; vTA1 = 72
    a(f'v_lshrrev_b32 v{vCB}, 1, v{vTb}')
    a(f'v_xor_b32 v{vCB}, v{vCB}, v{vTa}')
    a(f'v_lshlrev_b32 v{vCB}, 5, v{vCB}')
    a(f'v_and_b32 v{vWT}, 1, v{vTb}')
    a(f'v_lshl_add_u32 v{vCB}, v{vWT}, 4, v{vCB}')
    a(f's_lshl_b32 s60, s{sW}, 13'); a(f's_add_u32 s60, s60, {STG}')

    def wide_setup(log2stride, sbase, rows_per_wave):
        a(f's_mul_i32 s58, s{sW}, {rows_per_wave << log2stride}')
        a(f's_add_u32 s58, s58, s{sbase}')
        a(f'v_lshl_add_u32 v{vWA}, v{vTa}, {log2stride}, v{vCB}')
        a(f'v_xor_b32 v{vWB}, 128, v{vWA}')
        a(f'v_add_u32 v{vWA}, s58, v{vWA}')
        a(f'v_add_u32 v{vWB}, s58, v{vWB}')

    def issue_task(k):
        slot = k % 4
        if k < 8:
            S = S_WQ if k < 4 else S_WO
            ls = 13 if k < 4 else 10
            if k == 0:
                a('s_lshl_b32 s59, s57, 8'); wide_setup(13, 59, 32)
            if k == 4:
                a(f's_lshl_b32 s59, s{sX}, 19'); a(f's_lshl_b32 s61, s{sT}, 8'); a('s_add_u32 s59, s59, s61')
                wide_setup(10, 59, 32)
            for m in range(8):
                src = vWA if (m >> 1) & 1 == 0 else vWB
                a(f's_add_u32 m0, s60, {slot*32768 + m*1024}')
                a(f'v_add_u32 v{vWT}, {((k % 4)*128 + 4*m) << ls}, v{src}')
                a(f'buffer_load_dwordx4 v{vWT}, s[{S}:{S+3}], 0 offen nt lds'); vm.issue(('t', k))
        elif k < 12:
            S = S_G if k < 10 else S_U
            for m in range(8):
                c = (k % 2)*8 + m
                a(f's_add_u32 m0, s60, {slot*32768 + m*1024}')
                a(f'v_add_u32 v{vWT}, {c*32*2752}, v{vGU}')
                a(f'buffer_load_dwordx4 v{vWT}, s[{S}:{S+3}], 0 offen lds'); vm.issue(('t', k))
        else:
            if k == 12:
                a(f's_mul_i32 s59, s{sX}, {192*1024}'); a(f's_lshl_b32 s61, s{sT}, 8'); a('s_add_u32 s59, s59, s61')
                wide_setup(10, 59, 32)
                for m in range(8):
                    src = vWA if (m >> 1) & 1 == 0 else vWB
                    a(f's_add_u32 m0, s60, {slot*32768 + m*1024}')
                    a(f'v_add_u32 v{vWT}, {(4*m) << 10}, v{src}')
                    a(f'buffer_load_dwordx4 v{vWT}, s[{S_WD}:{S_WD+3}], 0 offen nt lds'); vm.issue(('t', k))
            else:
                wide_setup(10, 59, 16)
                a(f's_lshl_b32 s61, s{sW}, 12')
                for m in range(4):
                    src = vWA if (m >> 1) & 1 == 0 else vWB
                    a(f's_add_u32 m0, s61, {STG + slot*32768 + m*1024}')
                    a(f'v_add_u32 v{vWT}, {(128 + 4*m) << 10}, v{src}')
                    a(f'buffer_load_dwordx4 v{vWT}, s[{S_WD}:{S_WD+3}], 0 offen nt lds'); vm.issue(('t', k))

    def half(reg, h):
        k = reg[0]; lo = int(reg[2:reg.index(':')])
        return vr(lo + 2*h, 2, k)

    def read_task(k):
        slot = k % 4
        if k < 8 or k >= 12:
            a(f'v_add_u32 v{vTA0}, {STG + slot*32768}, v{vTR0}')
            a(f'v_add_u32 v{vTA1}, {STG + slot*32768}, v{vTR1}')
            ncs = 2 if k == 13 else 4
            n = 0
            for cc in range(ncs):
                for t in range(2):
                    if k < 4: fr = wq(t, 4*k + cc)
                    elif k < 8: fr = wo(t, 4*(k-4) + cc)
                    else: fr = wd(t, 4*(k-12) + cc)
                    for h in range(2):
                        a(f'ds_read_b64_tr_b16 {half(fr,h)}, v{vTA0 + t} offset:{cc*8192 + h*1024}')
                        n += 1
                        if n == 12: a('s_waitcnt lgkmcnt(4)')
        else:
            a(f'v_add_u32 v{vTA0}, s60, v{vL8}')
            a(f'v_add_u32 v{vTA0}, {slot*32768}, v{vTA0}')
            n = 0
            for m in range(8):
                c = (k % 2)*8 + m
                fr = wg(c) if k < 10 else wu(c)
                for h in range(2):
                    a(f'ds_read_b64_tr_b16 {half(fr,h)}, v{vTA0} offset:{m*1024 + h*512}')
                    n += 1
                    if n == 12: a('s_waitcnt lgkmcnt(4)')
        a('s_waitcnt lgkmcnt(0)')

    for k in range(4): issue_task(k)
    stamp(0, vt=vTc)

    srd(S_DBG, 68, 69, '256'); srd(S_WO, 78, 79, '0x400000'); srd(S_WD, 84, 85, hex(1376*1024)); srd(S_OUT, 86, 87, '8192')
    a(f's_mul_i32 s58, s{sX}, 12'); a(f's_mul_i32 s59, s{sT}, 3'); a(f's_add_u32 s59, s59, s{sW}')
    a('s_add_u32 s58, s58, s59')
    a('s_cmp_lt_u32 s58, 86'); a(f's_cselect_b32 s61, {512*2752}, 0')
    a(f's_cmp_lt_u32 s{sW}, 3'); a('s_cselect_b32 s61, s61, 0')
    srd(S_G, 80, 81, 's61'); srd(S_U, 82, 83, 's61')
    a(f'v_bfe_u32 v{vGU}, v0, 3, 2'); a(f'v_lshlrev_b32 v{vGU}, 3, v{vGU}')
    a(f'v_lshrrev_b32 v{vWT}, 5, v0'); a(f'v_lshl_add_u32 v{vGU}, v{vWT}, 2, v{vGU}')
    a(f'v_bfe_u32 v{vWT}, v0, 1, 2'); a(f'v_add_u32 v{vGU}, v{vGU}, v{vWT}')
    a(f'v_mul_u32_u24 v{vGU}, 2752, v{vGU}')
    a(f'v_and_b32 v{vWT}, 1, v0'); a(f'v_lshl_add_u32 v{vGU}, v{vWT}, 4, v{vGU}')
    a('s_lshl_b32 s58, s58, 5'); a(f'v_add_u32 v{vGU}, s58, v{vGU}')
    a(f'v_lshrrev_b32 v{vTc}, 2, v{vTb}')
    a(f'v_and_b32 v{vTd}, 1, v{vTa}'); a(f'v_lshl_add_u32 v{vTd}, v{vTd}, 2, v{vTc}')
    a(f's_lshl_b32 s58, s{sW}, 1')
    a(f'v_xor_b32 v{vTd}, s58, v{vTd}')
    a(f'v_lshl_add_u32 v{vTc}, v{vTa}, 3, v{vTc}')
    a(f'v_lshlrev_b32 v{vTc}, 8, v{vTc}')
    a(f'v_lshl_add_u32 v{vTR0}, v{vTd}, 5, v{vTc}')
    a(f'v_and_b32 v{vTc}, 3, v{vTb}'); a(f'v_lshl_add_u32 v{vTR0}, v{vTc}, 3, v{vTR0}')
    a(f'v_xor_b32 v{vTR1}, 32, v{vTR0}')
    a(f'v_lshlrev_b32 v{vHS}, 9, v{vTb}'); a(f'v_lshl_add_u32 v{vHS}, v{vTa}, 3, v{vHS}')
    a('s_lshl_b32 s58, s59, 5'); a(f'v_add_u32 v{vHS}, s58, v{vHS}')
    a(f'v_lshlrev_b32 v{vST}, 9, v{vTb}'); a(f'v_lshl_add_u32 v{vST}, v{vTa}, 4, v{vST}')
    a(f's_lshl_b32 s58, s{sW}, 7'); a(f'v_add_u32 v{vST}, s58, v{vST}')
    a(f'v_lshlrev_b32 v{vQS}, 13, v{vTb}'); a(f'v_lshl_add_u32 v{vQS}, v{vTa}, 3, v{vQS}')
    a(f's_lshl_b32 s58, s{sW}, 6'); a(f'v_add_u32 v{vQS}, s58, v{vQS}')
    a(f'v_and_b32 v{vTc}, 1, v{vTb}')
    a(f'v_lshlrev_b32 v{vH}, 9, v{vTc}'); a(f'v_lshl_add_u32 v{vH}, v{vTa}, 4, v{vH}')
    a(f'v_and_b32 v{vTd}, 7, v{vTb}'); a(f'v_mul_u32_u24 v{vBF}, {XS}, v{vTd}'); a(f'v_lshl_add_u32 v{vBF}, v{vTa}, 4, v{vBF}')
    a(f'v_cmp_eq_u32 vcc, 7, v{vTd}'); a(f'v_cndmask_b32 v{vML}, v{vTd}, 0, vcc')
    a(f'v_lshlrev_b32 v{vML}, 3, v{vML}'); a(f'v_add_u32 v{vML}, 3584, v{vML}')
    a(f'v_lshrrev_b32 v{vOW}, 3, v{vTb}'); a(f'v_lshl_add_u32 v{vOW}, v{vOW}, 4, v{vTd}'); a(f'v_lshl_add_u32 v{vOW}, v{vTa}, 5, v{vOW}')
    a(f'v_lshlrev_b32 v{vOW}, 1, v{vOW}'); a(f's_lshl_b32 s58, s{sW}, 8'); a(f'v_add_u32 v{vOW}, s58, v{vOW}')
    a(f'v_and_b32 v{vTc}, 31, v0'); a(f'v_lshlrev_b32 v{vTc}, 3, v{vTc}'); a(f'v_add_u32 v{vTc}, s58, v{vTc}')
    a(f'v_lshrrev_b32 v{vTd}, 5, v0')
    a(f'v_lshl_add_u32 v{vXR}, v{vTd}, 13, v{vTc}')
    a(f'v_mul_u32_u24 v{vXW}, {XS}, v{vTd}'); a(f'v_add_u32 v{vXW}, v{vXW}, v{vTc}')
    a(f'v_lshlrev_b32 v{vSTR}, 5, v{vTd}')
    a(f's_lshl_b32 s58, s{sW}, 3'); a(f'v_add_u32 v{vSTW}, s58, v{vSTR}')
    a(f's_mov_b32 s{sM2}, 0x00030003'); a(f's_mov_b32 s{sM2+1}, 0x00030003')
    a(f's_mov_b32 s{sM1}, 0x00010001'); a(f's_mov_b32 s{sM1+1}, 0x00010001')

    def ln_finish(s1, s2, u):
        a(f'v_mul_f32 v{s1}, {f32(1/512)}, v{s1}')
        a(f'v_mul_f32 v{s2}, {f32(1/512)}, v{s2}')
        a(f'v_fma_f32 v{s2}, -v{s1}, v{s1}, v{s2}')
        a(f'v_max_f32 v{s2}, 0, v{s2}')
        a(f'v_cvt_pk_bf16_f32 v{u}, v{s1}, v{s2}')
        a(f'v_and_b32 v{s2}, s{sHI}, v{u}')
        a(f'v_lshlrev_b32 v{s1}, 16, v{u}')
        a(f'v_add_f32 v{s2}, {f32(1e-5)}, v{s2}')
        a(f'v_cvt_pk_bf16_f32 v{u}, v{s2}, v{s2}')
        a(f'v_and_b32 v{s2}, s{sHI}, v{u}')
        a(f'v_sqrt_f32 v{s2}, v{s2}')
        return [f'v_cvt_pk_bf16_f32 v{u}, v{s2}, v{s2}', f'v_and_b32 v{s2}, s{sHI}, v{u}', f'v_rcp_f32 v{s2}, v{s2}']

    def normalize(xs, ds, outs, mb, rs, tail):
        n = len(xs)
        for i in range(n): a(f'v_sub_f32 v{ds[i]}, v{xs[i]}, v{mb}')
        for o in tail: a(o)
        for i in range(0, n, 2): a(f'v_cvt_pk_bf16_f32 v{outs[i//2]}, v{ds[i]}, v{ds[i+1]}')
        for i in range(0, n, 2):
            a(f'v_lshlrev_b32 v{ds[i]}, 16, v{outs[i//2]}'); a(f'v_and_b32 v{ds[i+1]}, s{sHI}, v{outs[i//2]}')
        for i in range(n): a(f'v_mul_f32 v{ds[i]}, v{ds[i]}, v{rs}')
        for i in range(0, n, 2): a(f'v_cvt_pk_bf16_f32 v{outs[i//2]}, v{ds[i]}, v{ds[i+1]}')

    def row16_sum2(p, q):
        for pat in ('quad_perm:[1,0,3,2]', 'quad_perm:[2,3,0,1]', 'row_half_mirror', 'row_mirror'):
            a(f'v_add_f32_dpp v{p}, v{p}, v{p} {pat} {DPPF}')
            a(f'v_add_f32_dpp v{q}, v{q}, v{q} {pat} {DPPF}')

    vm.wait('x')
    a(f'v_lshlrev_b32 v{vTc}, 5, v0'); a(f's_lshl_b32 s58, s{sW}, 11'); a(f'v_add_u32 v{vTc}, s58, v{vTc}')
    a(f'ds_write_b128 v{vTc}, {vr(vB,4)} offset:{XR}')
    a(f'ds_write_b128 v{vTc}, {vr(vB+4,4)} offset:{XR+16}')
    a(f'v_mov_b32 v{vD+4}, 0'); a(f'v_mov_b32 v{vD+5}, 0')
    a(f's_lshl_b32 s58, s{sW}, 9'); a(f'v_add_u32 v{vTc}, s58, v{vL8}')
    a(f'ds_write_b64 v{vTc}, {vr(vD+4,2)} offset:{XR+8192}')
    xs = list(range(vB+8, vB+24))
    for i in range(8):
        a(f'v_lshlrev_b32 v{xs[2*i]}, 16, v{vB+i}'); a(f'v_and_b32 v{xs[2*i+1]}, s{sHI}, v{vB+i}')
    s1, s2, u = vX, vX+1, vX+2
    a(f'v_add_f32 v{s1}, v{xs[0]}, v{xs[1]}'); a(f'v_mul_f32 v{s2}, v{xs[0]}, v{xs[0]}'); a(f'v_fmac_f32 v{s2}, v{xs[1]}, v{xs[1]}')
    for i in range(2, 16):
        a(f'v_add_f32 v{s1}, v{s1}, v{xs[i]}'); a(f'v_fmac_f32 v{s2}, v{xs[i]}, v{xs[i]}')
    row16_sum2(s1, s2)
    a(f'ds_swizzle_b32 v{vTc}, v{s1} offset:0x401F'); a(f'ds_swizzle_b32 v{vTd}, v{s2} offset:0x401F')
    a('s_waitcnt lgkmcnt(0)')
    a(f'v_add_f32 v{s1}, v{s1}, v{vTc}'); a(f'v_add_f32 v{s2}, v{s2}, v{vTd}')
    tail = ln_finish(s1, s2, u)
    normalize(xs, xs, list(range(vB, vB+8)), s1, s2, tail)
    a(f'v_lshrrev_b32 v{vTd}, 5, v0'); a(f'v_mul_u32_u24 v{vTd}, {XS}, v{vTd}')
    a(f'v_and_b32 v{vTc}, 31, v0'); a(f'v_lshl_add_u32 v{vTc}, v{vTc}, 5, v{vTd}')
    a(f's_mul_i32 s58, s{sW}, {2*XS}'); a(f'v_add_u32 v{vTc}, s58, v{vTc}')
    a(f'ds_write_b128 v{vTc}, {vr(vB,4)} offset:{XB}')
    a(f'ds_write_b128 v{vTc}, {vr(vB+4,4)} offset:{XB+16}')
    a('s_waitcnt lgkmcnt(0)')

    def gemv(off, chains, nk=16, ring=12):
        for c in range(min(ring, nk)):
            a(f'ds_read_b128 {vr(vB+4*c,4)}, v{vBF} offset:{off + c*64}')
        issued = min(ring, nk)
        for c in range(nk):
            a(f's_waitcnt lgkmcnt({issued - 1 - c})')
            for (Dr, fn) in chains:
                a(f'v_mfma_f32_16x16x32_bf16 {vr(Dr,4)}, {fn(c)}, {vr(vB+4*(c % ring),4)}, {"0" if c == 0 else vr(Dr,4)}')
            if issued < nk:
                a(f'ds_read_b128 {vr(vB+4*(issued % ring),4)}, v{vBF} offset:{off + issued*64}')
                issued += 1

    def q_store(mask_lo, flagged):
        for t in range(2):
            a(f'v_cvt_pk_bf16_f32 v{vD+4*t}, v{vD+4*t}, v{vD+4*t+1}')
            a(f'v_cvt_pk_bf16_f32 v{vD+4*t+1}, v{vD+4*t+2}, v{vD+4*t+3}')
        for t in range(2):
            a(f'v_min_u32 v{vD+4*t}, -2, v{vD+4*t}'); a(f'v_min_u32 v{vD+4*t+1}, -2, v{vD+4*t+1}')
        exec_set(mask_lo, mask_lo)
        def st(fl):
            for t in range(2):
                a(f'buffer_store_dwordx2 {vr(vD+4*t,2)}, v{vQS}, {WS}, s{sQW} offen offset:{t*32} {fl}')
        if flagged: local_or_sc1(st)
        else: st('sc1')
        exec_all()

    def local_or_sc1(st):
        nl, dn = L('nl'), L('dn')
        a(f's_cmp_eq_u32 s{sLOCAL}, 0'); a(f's_cbranch_scc1 {nl}')
        st(''); a(f's_branch {dn}')
        a.label(nl); st('sc1'); a.label(dn)

    NT = 14
    for k in range(NT):
        vm.wait(('t', k))
        a('s_barrier')
        if k == 0:
            sk = L('cat')
            a(f's_cmp_lg_u32 s{sW}, 0'); a(f's_cbranch_scc1 {sk}')
            a(f's_lshl_b32 s58, s{sX}, 5'); a(f'v_mov_b32 v{vTc}, s{sVAL}')
            a('s_mov_b64 exec, 1')
            a(f'buffer_atomic_add v{vTc}, off, s[{S_DBG}:{S_DBG+3}], s58 sc1')
            exec_all()
            a.label(sk)
        if k >= 1 and k + 3 < NT: issue_task(k + 3)
        if k == 5:
            a(f'v_and_b32 v{vTc}, 1, v0'); a(f'v_mul_u32_u24 v{vBF}, {XS}, v{vTc}'); a(f'v_lshl_add_u32 v{vBF}, v{vTa}, 4, v{vBF}')
            a(f'v_mov_b32 v{vTc}, 0'); a(f's_lshl_b32 s58, s{sW}, 8')
            a(f'v_lshl_add_u32 v{vTd}, v0, 2, s58')
            a(f'ds_write_b32 v{vTd}, v{vTc} offset:{OB + XS}')
        read_task(k)
        if k == 3:
            gemv(XB, [(vD, lambda c: wq(0, c)), (vD+4, lambda c: wq(1, c))], ring=8)
            q_store('0x00ff00ff', False)
            a(f's_add_u32 s{sQW}, s{sQW}, {8*8192}')
            stamp(1, vt=vTc)
    stamp(2, vt=vTc)

    lp = L('cfl')
    a(f'v_and_b32 v{vTc}, 7, v0'); a(f'v_lshlrev_b32 v{vTc}, 5, v{vTc}')
    a.label(lp)
    spin_dec()
    a(f'buffer_load_dword v{vTd}, v{vTc}, s[{S_DBG}:{S_DBG+3}], 0 offen sc1')
    a('s_waitcnt vmcnt(0)')
    a(f'v_and_b32 v{vB}, 63, v{vTd}')
    a(f'v_cmp_ne_u32 vcc, 32, v{vB}')
    a(f's_cbranch_vccnz {lp}')
    a(f'v_readlane_b32 s58, v{vTd}, s{sX}')
    a(f's_lshl_b32 s59, s{sVAL}, 5')
    a('s_cmp_eq_u32 s58, s59')
    a(f's_cselect_b32 s{sLOCAL}, {0 if force_nonlocal else 1}, 0')
    stamp(3, vt=vTc)

    a(f's_mov_b32 s{sS}, 0')
    a(f's_lshl_b32 s58, s{sX}, 2'); a(f's_add_u32 s58, s58, s{sW}')
    a(f's_lshl_b32 s{sJA}, s58, 12')
    a(f's_add_u32 s{sJB}, s{sJA}, {6*131072}')
    a(f's_lshl_b32 s{sP2R}, s{sW}, 13'); a(f's_add_u32 s{sP2R}, s{sP2R}, {G.P2B}')
    a(f's_mov_b32 s{sDES}, s2')
    a(f's_mov_b32 s{sOUTO}, {(-2048) & 0xffffffff}')

    def combine(sJ, row):
        lp, ok = L('cb'), L('cbok')
        ML = vB; O = vB + 2; M = vB + 16; W = vB + 17; Ls = vB + 18; A = vB + 20
        a.label(lp)
        spin_dec()
        a(f'buffer_load_dwordx2 {vr(ML,2)}, v{vML}, {WS}, s{sJ} offen sc1')
        for s in range(7):
            a(f'buffer_load_dwordx2 {vr(O+2*s,2)}, v{vL8}, {WS}, s{sJ} offen offset:{s*512} sc1')
        a('s_waitcnt vmcnt(7)')
        a(f'v_max_u32 v{M}, v{ML}, v{ML+1}')
        a(f'v_cmp_eq_u32 vcc, -1, v{M}')
        a(f's_cbranch_vccnz {lp}')
        exec_set('0x80808080', '0x80808080')
        a(f'v_mov_b32 v{ML}, 0x7f800000')
        exec_all()
        a(f'v_min_f32_dpp v{M}, v{ML}, v{ML} quad_perm:[1,0,3,2] {DPPF}')
        a(f'v_min_f32_dpp v{M}, v{M}, v{M} quad_perm:[2,3,0,1] {DPPF}')
        a(f'v_min_f32_dpp v{M}, v{M}, v{M} row_half_mirror {DPPF}')
        a(f'v_sub_f32 v{W}, v{M}, v{ML}')
        a(f'v_exp_f32 v{W}, v{W}')
        a(f'v_mul_f32 v{Ls}, v{W}, v{ML+1}')
        a('s_waitcnt vmcnt(0)')
        lch = [f'v_add_f32_dpp v{Ls}, v{Ls}, v{Ls} quad_perm:[1,0,3,2] {DPPF}',
               f'v_add_f32_dpp v{Ls}, v{Ls}, v{Ls} quad_perm:[2,3,0,1] {DPPF}',
               f'v_add_f32_dpp v{Ls}, v{Ls}, v{Ls} row_half_mirror {DPPF}',
               f'v_rcp_f32 v{Ls}, v{Ls}']
        for s in range(7):
            op = 'v_mul_f32_dpp' if s < 2 else 'v_fmac_f32_dpp'
            for e in range(2):
                a(f'{op} v{A + 2*(s % 2) + e}, v{W}, v{O+2*s+e} row_newbcast:{s} {DPPF}')
            if lch: a(lch.pop(0))
        a(f'v_add_f32 v{A}, v{A}, v{A+2}'); a(f'v_add_f32 v{A+1}, v{A+1}, v{A+3}')
        a(f'v_mul_f32 v{A}, v{A}, v{Ls}'); a(f'v_mul_f32 v{A+1}, v{A+1}, v{Ls}')
        a(f'v_cmp_u_f32 vcc, v{A}, v{A+1}')
        a(f'v_cvt_pk_bf16_f32 v{A}, v{A}, v{A+1}')
        a(f's_cbranch_vccz {ok}')
        a(f'v_max_u32 v{M}, v{O}, v{O+1}')
        for s in range(1, 7): a(f'v_max3_u32 v{M}, v{M}, v{O+2*s}, v{O+2*s+1}')
        a(f'v_cmp_eq_u32 vcc, -1, v{M}')
        a(f's_cbranch_vccnz {lp}')
        a.label(ok)
        a(f'ds_write_b16 v{vOW}, v{A} offset:{OB + row*XS}')
        a(f'ds_write_b16_d16_hi v{vOW}, v{A} offset:{OB + row*XS + 16}')

    def part_store(extra):
        a(f's_add_u32 s58, s{sP2W}, {extra}')
        a(f's_mov_b64 exec, s[{sM2}:{sM2+1}]')
        for t in range(2):
            a(f'buffer_store_dwordx4 {vr(vD+4*t,4)}, v{vST}, {WS}, s58 offen offset:{t*64} sc1')
        exec_all()

    def hop(extra):
        lp, ok = L('hp'), L('hpok')
        Sm = vB + 32
        a(f's_add_u32 s58, s{sP2R}, {extra}'); a('s_add_u32 s59, s58, 4096')
        a.label(lp)
        spin_dec()
        for x in range(8):
            a(f'buffer_load_dwordx4 {vr(vB+4*x,4)}, v{vL16}, {WS}, s{58 + x//4} offen offset:{(x % 4)*1024} sc1')
        a('s_waitcnt vmcnt(6)')
        for r in range(4): a(f'v_add_f32 v{Sm+r}, v{vB+r}, v{vB+4+r}')
        for x in range(2, 8):
            a(f's_waitcnt vmcnt({7-x})')
            for r in range(4): a(f'v_add_f32 v{Sm+r}, v{Sm+r}, v{vB+4*x+r}')
        a(f'v_cmp_u_f32 vcc, v{Sm}, v{Sm+1}')
        a(f'v_cmp_u_f32 s[60:61], v{Sm+2}, v{Sm+3}')
        a('s_or_b64 vcc, vcc, s[60:61]')
        a(f's_cbranch_vccz {ok}')
        a(f'v_max_u32 v{vTc}, v{vB}, v{vB+1}')
        for k in range(1, 16): a(f'v_max3_u32 v{vTc}, v{vTc}, v{vB+2*k}, v{vB+2*k+1}')
        a(f'v_cmp_eq_u32 vcc, -1, v{vTc}')
        a(f's_cbranch_vccnz {lp}')
        a.label(ok)
        return Sm

    def add_resid(Sm):
        a(f'v_cvt_pk_bf16_f32 v{vTc}, v{Sm}, v{Sm+1}'); a(f'v_cvt_pk_bf16_f32 v{vTd}, v{Sm+2}, v{Sm+3}')
        a(f'v_lshlrev_b32 v{Sm}, 16, v{vTc}'); a(f'v_and_b32 v{Sm+1}, s{sHI}, v{vTc}')
        a(f'v_lshlrev_b32 v{Sm+2}, 16, v{vTd}'); a(f'v_and_b32 v{Sm+3}, s{sHI}, v{vTd}')
        for r in range(4): a(f'v_add_f32 v{vX+r}, v{vX+r}, v{Sm+r}')
        a(f'v_cvt_pk_bf16_f32 v{vR}, v{vX}, v{vX+1}'); a(f'v_cvt_pk_bf16_f32 v{vR+1}, v{vX+2}, v{vX+3}')
        unpack_x()
    def unpack_x():
        a(f'v_lshlrev_b32 v{vX}, 16, v{vR}'); a(f'v_and_b32 v{vX+1}, s{sHI}, v{vR}')
        a(f'v_lshlrev_b32 v{vX+2}, 16, v{vR+1}'); a(f'v_and_b32 v{vX+3}, s{sHI}, v{vR+1}')

    def layernorm(st, dst):
        s1, s2, u = vB, vB+1, vB+2
        a(f'v_add_f32 v{s1}, v{vX}, v{vX+1}'); a(f'v_mul_f32 v{s2}, v{vX}, v{vX}')
        a(f'v_add_f32 v{u}, v{vX+2}, v{vX+3}'); a(f'v_fmac_f32 v{s2}, v{vX+1}, v{vX+1}')
        a(f'v_add_f32 v{s1}, v{s1}, v{u}'); a(f'v_fmac_f32 v{s2}, v{vX+2}, v{vX+2}')
        a(f'v_fmac_f32 v{s2}, v{vX+3}, v{vX+3}')
        row16_sum2(s1, s2)
        a(f'v_add_f32_dpp v{s1}, v{s1}, v{s1} row_bcast:15 row_mask:0xa bank_mask:0xf')
        a(f'v_add_f32_dpp v{s2}, v{s2}, v{s2} row_bcast:15 row_mask:0xa bank_mask:0xf')
        exec_set('0x10000', '0x10000')
        a(f'ds_write_b64 v{vSTW}, {vr(s1,2)} offset:{STATS + st*64}')
        exec_all()
        a('s_waitcnt lgkmcnt(0)')
        a('s_barrier')
        a(f'ds_read_b128 {vr(vB+4,4)}, v{vSTR} offset:{STATS + st*64}')
        a(f'ds_read_b128 {vr(vB+8,4)}, v{vSTR} offset:{STATS + st*64 + 16}')
        a('s_waitcnt lgkmcnt(1)')
        a(f'v_add_f32 v{s1}, v{vB+4}, v{vB+6}'); a(f'v_add_f32 v{s2}, v{vB+5}, v{vB+7}')
        a('s_waitcnt lgkmcnt(0)')
        a(f'v_add_f32 v{vB+8}, v{vB+8}, v{vB+10}'); a(f'v_add_f32 v{vB+9}, v{vB+9}, v{vB+11}')
        a(f'v_add_f32 v{s1}, v{s1}, v{vB+8}'); a(f'v_add_f32 v{s2}, v{s2}, v{vB+9}')
        tail = ln_finish(s1, s2, u)
        normalize([vX+r for r in range(4)], [vB+4+r for r in range(4)], [vB+8, vB+9], s1, s2, tail)
        a(f'ds_write_b64 v{vXW}, {vr(vB+8,2)} offset:{dst}')
        a('s_waitcnt lgkmcnt(0)')
        a('s_barrier')

    a.label('Lstep')
    a.fence()
    nb = L('nob')
    a(f's_cmp_lt_u32 s{sS}, 2'); a(f's_cbranch_scc1 {nb}')
    combine(sJB, 1)
    a.label(nb)
    nf = L('nofin')
    a(f's_cmp_lg_u32 s{sS}, 8'); a(f's_cbranch_scc1 {nf}')
    a(f's_add_u32 s{sJA}, s{sJA}, {7*131072}')
    exec_set('-1', '0')
    a(f'v_add_u32 v{vXR}, {9*1024}, v{vXR}')
    exec_all()
    a.label(nf)
    a(f'ds_read_b64 {vr(vR,2)}, v{vXR} offset:{XR}')
    a('s_waitcnt lgkmcnt(0)')
    unpack_x()
    stamp((sS, 16, 16), vt=vTc)
    combine(sJA, 0)
    stamp((sS, 16, 17), vt=vTc)
    a('s_waitcnt lgkmcnt(0)')
    a('s_barrier')
    gemv(OB, [(vD, lambda c: wo(0, c)), (vD+4, lambda c: wo(1, c))])
    part_store(0)
    stamp((sS, 16, 18), vt=vTc)
    Sm = hop(0)
    stamp((sS, 16, 19), vt=vTc)
    add_resid(Sm)
    layernorm(0, XB1)
    stamp((sS, 16, 20), vt=vTc)
    nf1 = L('nof1')
    a(f's_cmp_eq_u32 s{sW}, 3'); a(f's_cbranch_scc1 {nf1}')
    gemv(XB1, [(vD, wg), (vD+4, wu)])
    for r in range(4): a(f'v_mul_f32 v{vD+r}, {f32(-G.LOG2E)}, v{vD+r}')
    for r in range(4): a(f'v_exp_f32 v{vD+r}, v{vD+r}')
    for r in range(4): a(f'v_add_f32 v{vD+r}, 1.0, v{vD+r}')
    for r in range(4): a(f'v_rcp_f32 v{vD+r}, v{vD+r}')
    for r in range(4): a(f'v_mul_f32 v{vD+r}, v{vD+r}, v{vD+4+r}')
    a(f'v_cvt_pk_bf16_f32 v{vD}, v{vD}, v{vD+1}'); a(f'v_cvt_pk_bf16_f32 v{vD+1}, v{vD+2}, v{vD+3}')
    a(f'v_min_u32 v{vD}, -2, v{vD}'); a(f'v_min_u32 v{vD+1}, -2, v{vD+1}')
    a(f's_mov_b64 exec, s[{sM2}:{sM2+1}]')
    local_or_sc1(lambda fl: a(f'buffer_store_dwordx2 {vr(vD,2)}, v{vHS}, {WS}, s{sHW} offen {fl}'))
    exec_all()
    a.label(nf1)
    stamp((sS, 16, 21), vt=vTc)
    lp = L('hh')
    a.label(lp)
    spin_dec()
    for c in range(6):
        a(f'buffer_load_dwordx4 {vr(vB+4*c,4)}, v{vH}, {WS}, s{sHW} offen offset:{c*64} sc1')
    for c in range(6):
        a(f's_waitcnt vmcnt({5-c})')
        for t in range(2):
            a(f'v_mfma_f32_16x16x32_bf16 {vr(vD+4*t,4)}, {wd(t,c)}, {vr(vB+4*c,4)}, {"0" if c == 0 else vr(vD+4*t,4)}')
            if c == 0 and t == 0: a(f'v_max_u32 v{vTc}, v{vB}, v{vB+1}')
            else: a(f'v_max3_u32 v{vTc}, v{vTc}, v{vB+4*c+2*t}, v{vB+4*c+2*t+1}')
    a(f'v_cmp_eq_u32 vcc, -1, v{vTc}')
    a('s_nop 4')
    a(f's_cbranch_vccnz {lp}')
    part_store(G.P3B - G.P2B)
    stamp((sS, 16, 22), vt=vTc)
    go = L('go3')
    a(f's_cmp_lg_u32 s{sS}, 8'); a(f's_cbranch_scc1 {go}')
    a(f's_cmp_lg_u32 s{sDES}, 0'); a('s_cbranch_scc1 Lend')
    a.label(go)
    Sm = hop(G.P3B - G.P2B)
    stamp((sS, 16, 23), vt=vTc)
    add_resid(Sm)
    no = L('noout')
    a(f's_cmp_lg_u32 s{sDES}, 0'); a(f's_cbranch_scc1 {no}')
    a(f's_cmp_lt_u32 s{sS}, 2'); a(f's_cbranch_scc1 {no}')
    a(f'v_and_b32 v{vTc}, 1023, v{vXR}')
    a(f'v_lshrrev_b32 v{vTd}, 5, v0'); a(f'v_xor_b32 v{vTd}, 1, v{vTd}')
    a(f'v_lshl_add_u32 v{vTc}, v{vTd}, 10, v{vTc}')
    a(f'v_add_u32 v{vTc}, s{sOUTO}, v{vTc}')
    a(f's_cmp_eq_u32 s{sS}, 8'); a('s_cselect_b32 exec_lo, -1, 0')
    a(f'buffer_store_dwordx2 {vr(vR,2)}, v{vTc}, s[{S_OUT}:{S_OUT+3}], 0 offen')
    exec_all()
    stamp((sS, 16, 26), vt=vTc)
    a(f's_cmp_eq_u32 s{sS}, 8')
    a('s_cbranch_scc1 Lend')
    a.label(no)
    exec_set('-1', '0')
    a(f'ds_write_b64 v{vXR}, {vr(vR,2)} offset:{XR + 10240}')
    exec_all()
    layernorm(1, XB2)
    stamp((sS, 16, 24), vt=vTc)
    gemv(XB2, [(vD, lambda c: wq(0, c)), (vD+4, lambda c: wq(1, c))])
    q_store('0x00010001', True)
    stamp((sS, 16, 25), vt=vTc)
    a(f's_add_u32 s{sS}, s{sS}, 1')
    a(f's_add_u32 s{sJA}, s{sJA}, 131072'); a(f's_add_u32 s{sJB}, s{sJB}, 131072')
    a(f's_add_u32 s{sP2W}, s{sP2W}, 32768'); a(f's_add_u32 s{sP2R}, s{sP2R}, 32768')
    a(f's_add_u32 s{sHW}, s{sHW}, 8192'); a(f's_add_u32 s{sQW}, s{sQW}, 8192')
    a(f's_add_u32 s{sOUTO}, s{sOUTO}, 1024')
    a(f'v_add_u32 v{vXR}, 1024, v{vXR}')
    a('s_branch Lstep')
```

```python
import sys, struct
sys.path.insert(0, 'gen')
from asmlib import Asm, vr

NAME = 'interleave_layers__gqa_block_cached__glu_gated_glu__decode'
def f32(x): return '0x%08x' % struct.unpack('<I', struct.pack('<f', x))[0]
LOG2E = 1.4426950408889634
SCALE = 128 ** -0.5

PART = 0x000000
P2B = 0x200000
P3B = 0x250000
HB = 0x2A0000
QB = 0x2C0000
STAMP = 0x300000
WS_BYTES = 0x400000
LDS_BYTES = 163840
SPIN = 400000

DPPF = 'row_mask:0xf bank_mask:0xf'

class VM:
    def __init__(self, a): self.a = a; self.q = []
    def reset(self, tags): self.q = list(tags)
    def issue(self, tag): self.q.append(tag)
    def wait(self, tag):
        if tag not in self.q: return
        i = len(self.q) - 1 - self.q[::-1].index(tag)
        n = len(self.q) - 1 - i
        assert n <= 63
        self.a(f's_waitcnt vmcnt({n})')
        self.q = self.q[i+1:]
    def drain(self):
        self.a('s_waitcnt vmcnt(0)'); self.q = []

def gen(D=8, stamps=False, checks=(62, 68, 74), force_nonlocal=False, spin=SPIN):
    assert D <= 8
    a = Asm()
    uid = [0]
    def L(p):
        uid[0] += 1
        return f'L{p}_{uid[0]}'

    hdr = open(f'cdna_kernels/{NAME}.s.ref').read().split('\n')
    for ln in hdr:
        if ln.startswith('; @launch'): break
        a.raw(ln)
    a.raw(f'; @launch grid=(256,1,1) block=(256,1,1) lds={LDS_BYTES}')
    a.raw('.amdgcn_target "amdgcn-amd-amdhsa--gfx950"')
    a.raw('.text')
    a.raw(f'.globl {NAME}_kernel')
    a.raw('.p2align 8')
    a.raw(f'.type {NAME}_kernel,@function')
    a.raw(f'{NAME}_kernel:')

    S_WS = 20
    S_DBG = 24
    sX, sT, sW, sVAL, sLOCAL, sSPIN = 90, 91, 92, 93, 32, 33
    sSCALE, sHI = 94, 95
    sSTO = 96

    def srd(b, lo, hi, nrec):
        a(f's_mov_b32 s{b}, s{lo}'); a(f's_mov_b32 s{b+1}, s{hi}')
        a(f's_mov_b32 s{b+2}, {nrec}'); a(f's_mov_b32 s{b+3}, 0x20000')

    def stamp(k, vt=0, extra=None):
        if not stamps: return
        a('s_memrealtime s[98:99]')
        a('s_waitcnt lgkmcnt(0)')
        a('s_mov_b64 s[100:101], exec')
        a('s_mov_b64 exec, 1')
        a(f'v_mov_b32 v{vt}, s98')
        if isinstance(k, int):
            a(f'buffer_store_dword v{vt}, off, s[{S_WS}:{S_WS+3}], s{sSTO} offset:{k*4}')
        else:
            sg, mul, add = k
            a(f's_mul_i32 s97, s{sg}, {mul*4}')
            a(f's_add_u32 s97, s97, s{sSTO}')
            a(f'buffer_store_dword v{vt}, off, s[{S_WS}:{S_WS+3}], s97 offset:{add*4}')
        a('s_mov_b64 exec, s[100:101]')

    def spin_dec():
        a(f's_sub_u32 s{sSPIN}, s{sSPIN}, 1')
        a('s_cbranch_scc1 Lend')

    a('s_cmp_ge_u32 s2, 256')
    a('s_cbranch_scc1 Lend')
    a('s_load_dwordx4 s[64:67], s[0:1], 8')
    a('s_load_dwordx4 s[68:71], s[0:1], 80')
    a('v_lshrrev_b32 v1, 6, v0')
    a('v_and_b32 v0, 63, v0')
    a(f's_and_b32 s{sX}, s2, 7')
    a(f's_lshr_b32 s{sT}, s2, 3')
    a(f'v_readfirstlane_b32 s{sW}, v1')
    a(f's_mov_b32 s{sSPIN}, {spin}')
    a(f's_mov_b32 s{sSCALE}, {f32(SCALE)}')
    a(f's_mov_b32 s{sHI}, 0xffff0000')
    a('s_getreg_b32 s3, hwreg(HW_REG_XCC_ID, 0, 4)')
    a('s_and_b32 s3, s3, 7')
    a(f's_mul_i32 s{sVAL}, s3, s3')
    a(f's_lshl_b32 s{sVAL}, s{sVAL}, 14')
    a('s_lshl_b32 s3, s3, 6')
    a(f's_add_u32 s{sVAL}, s{sVAL}, s3')
    a(f's_add_u32 s{sVAL}, s{sVAL}, 1')
    if stamps:
        a(f's_lshl_b32 s{sSTO}, s2, 2'); a(f's_add_u32 s{sSTO}, s{sSTO}, s{sW}')
        a(f's_lshl_b32 s{sSTO}, s{sSTO}, 10'); a(f's_add_u32 s{sSTO}, s{sSTO}, {STAMP}')
    a(f's_cmp_lt_u32 s{sT}, 4')
    a('s_cbranch_scc1 Lchain')

    S_K, S_V, S_KL, S_VL = 4, 8, 12, 16
    sBASE, sOFF, sB, sP2D = 28, 29, 30, 31
    sQ2, sQ1, sPUB1, sPUB2, sLDS = 34, 35, 36, 37, 38
    sMT = 40
    sTAIL = 48
    sRET = 50
    sALT = 52
    sW512, sW8, sML = 53, 54, 55
    vT0, vKOFF, vVOFF, vQOFF, vLDS, vT1 = 0, 1, 2, 3, 4, 5
    vP1 = 6; vBQ = 16; vMASK = 32; vQ = 36; vQA = 40; vD1 = 52; vB1 = 60
    RING = 9216
    TAU = (0, 2, 1, 3)

    def kslot(R, k):
        return vr(64 + 96*R + 4*k, 4) if k < 24 else vr(128*R + 4*(k-24), 4, 'a')
    def vslot(R, k):
        idx = 13 + (18 if k == 36 else (k-1)//2)
        return vr(128*R + 4*idx, 4, 'a')
    def v_in_lds(k): return k % 2 == 0 and k < 36
    def lds_off(R, k): return (R*18 + k//2) * 1024

    vm = VM(a)
    soff_known = [None]
    def load(n, R, tagb):
        isk = n < 37
        k = n if isk else n - 37
        grp = k // 4
        if soff_known[0] != grp:
            a(f's_add_u32 s{sOFF}, s{sBASE}, {grp*4096}')
            soff_known[0] = grp
        io = (k % 4) * 1024
        sr = (S_KL if k == 36 else S_K) if isk else (S_VL if k == 36 else S_V)
        vo = vKOFF if isk else vVOFF
        if (not isk) and v_in_lds(k):
            a(f's_add_u32 m0, s{sLDS}, {lds_off(R, k) - io + RING}')
            a(f'buffer_load_dwordx4 v{vo}, s[{sr}:{sr+3}], s{sOFF} offen offset:{io} nt lds')
        else:
            dst = kslot(R, k) if isk else vslot(R, k)
            a(f'buffer_load_dwordx4 {dst}, v{vo}, s[{sr}:{sr+3}], s{sOFF} offen offset:{io} nt')
        vm.issue((tagb, n))

    def qload(sreg, tag):
        a(f'buffer_load_dwordx4 {vr(vQ,4)}, v{vQOFF}, s[{S_WS}:{S_WS+3}], s{sreg} offen sc1')
        if tag: vm.issue(tag)

    def qcheck():
        a(f'v_max3_u32 v{vT0}, v{vQ}, v{vQ+1}, v{vQ+2}')
        a(f'v_max_u32 v{vT0}, v{vT0}, v{vQ+3}')
        a(f'v_cmp_eq_u32 vcc, -1, v{vT0}')

    def qwait_blocking(sreg, first_loaded):
        lp, ok, chk = L('qw'), L('qok'), L('qchk')
        if first_loaded:
            a(f's_branch {chk}')
        a.label(lp)
        spin_dec()
        qload(sreg, None)
        a('s_waitcnt vmcnt(0)')
        a.label(chk)
        qcheck()
        a(f's_cbranch_vccnz {lp}')

    def build_bq():
        for t in range(4):
            for r in range(4):
                a(f'v_cndmask_b32 v{vBQ+4*t+r}, 0, v{vQ+r}, s[{sMT+2*t}:{sMT+2*t+1}]')

    def qk_mfma(R, k, Q):
        t = TAU[k % 4]
        c = '0' if k % 4 == 0 else vr(Q, 4)
        return f'v_mfma_f32_16x16x32_bf16 {vr(Q,4)}, {kslot(R,k)}, {vr(vBQ+4*t,4)}, {c}'

    def diag_ops(S, Q):
        return [f'v_mov_b32_dpp v{S}, v{Q} quad_perm:[0,0,0,0] {DPPF}',
                f'v_add_f32_dpp v{S}, v{Q+1}, v{S} quad_perm:[1,1,1,1] {DPPF}',
                f'v_add_f32_dpp v{S}, v{Q+2}, v{S} quad_perm:[2,2,2,2] {DPPF}',
                f'v_add_f32_dpp v{S}, v{Q+3}, v{S} quad_perm:[3,3,3,3] {DPPF}']
    def kill_ops(S):
        return [f's_mov_b64 exec, s[{sTAIL}:{sTAIL+1}]', f'v_mov_b32 v{S}, 0xff800000', 's_mov_b64 exec, -1']
    def round_ops(Sa, Sb, u):
        return [f'v_cvt_pk_bf16_f32 v{u}, v{Sa}, v{Sb}', f'v_lshlrev_b32 v{Sa}, 16, v{u}', f'v_and_b32 v{Sb}, s{sHI}, v{u}',
                f'v_mul_f32 v{Sa}, s{sSCALE}, v{Sa}', f'v_mul_f32 v{Sb}, s{sSCALE}, v{Sb}',
                f'v_cvt_pk_bf16_f32 v{u}, v{Sa}, v{Sb}', f'v_lshlrev_b32 v{Sa}, 16, v{u}', f'v_and_b32 v{Sb}, s{sHI}, v{u}']

    def kphase_fast(R, order, S, u, hook=None):
        dq = []; rq = []
        done = []
        n = len(order)
        for idx in range(n + 2):
            if idx >= 2:
                c2 = order[idx-2]
                dq = diag_ops(S + c2, vQA + 4*((idx-2) % 3))
            ms = []
            if idx < n:
                c = order[idx]
                ms = [qk_mfma(R, 4*c + k, vQA + 4*(idx % 3)) for k in range(4 if c < 9 else 1)]
            for k in range(4):
                if k < len(ms): a(ms[k])
                if dq: a(dq.pop(0))
                if rq: a(rq.pop(0))
            if idx >= 2:
                c2 = order[idx-2]
                if c2 == 9:
                    for o in kill_ops(S + 9): a(o)
                done.append(c2)
                if len(done) == 2:
                    rq += round_ops(S + done[0], S + done[1], u); done = []
            if hook: hook(idx)
        for o in rq: a(o)

    def wave_reduce(op, v):
        a(f'{op}_dpp v{v}, v{v}, v{v} row_ror:4 {DPPF}')
        a(f'{op}_dpp v{v}, v{v}, v{v} row_ror:8 {DPPF}')
        a(f'{op}_dpp v{v}, v{v}, v{v} row_bcast:15 row_mask:0xa bank_mask:0xf')
        a(f'{op}_dpp v{v}, v{v}, v{v} row_bcast:31 row_mask:0xc bank_mask:0xf')

    def max_phase(S, nmc, t2):
        a(f'v_max3_f32 v{nmc}, v{S}, v{S+1}, v{S+2}')
        a(f'v_max3_f32 v{t2}, v{S+3}, v{S+4}, v{S+5}')
        a(f'v_max3_f32 v{nmc}, v{nmc}, v{S+6}, v{S+7}')
        a(f'v_max3_f32 v{t2}, v{t2}, v{S+8}, v{S+9}')
        a(f'v_max_f32 v{nmc}, v{nmc}, v{t2}')
        wave_reduce('v_max_f32', nmc)
        a(f'v_mul_f32 v{nmc}, {f32(-LOG2E)}, v{nmc}')
        a(f'v_readlane_b32 s56, v{nmc}, 63')
        a(f'v_mov_b32 v{nmc}, s56')

    def exp_ops(S, nmc, l, first):
        return [f'v_fmamk_f32 v{S}, v{S}, {f32(LOG2E)}, v{nmc}', f'v_exp_f32 v{S}, v{S}',
                (f'v_mov_b32 v{l}, v{S}' if first else f'v_add_f32 v{l}, v{l}, v{S}'),
                f'v_cvt_pk_bf16_f32 v{S}, v{S}, v{S}']

    def ml_write(nmc, si):
        wave_reduce('v_add_f32', nmc + 1)
        a(f'v_mov_b32 v{vT0}, s{sW8}')
        a('s_mov_b32 exec_lo, 0'); a('s_mov_b32 exec_hi, 0x80000000')
        a(f'ds_write_b64 v{vT0}, {vr(nmc,2)} offset:{8192 + si*32}')
        a('s_mov_b64 exec, -1')

    def and_ops(B, p, pair):
        ops = []
        for r in range(4):
            mirrored = (r >= 2) if pair == 0 else (r < 2)
            if mirrored: ops.append(f'v_and_b32_dpp v{B+r}, v{p}, v{vMASK+r} row_half_mirror {DPPF}')
            else: ops.append(f'v_and_b32 v{B+r}, v{p}, v{vMASK+r}')
        return ops

    def pv_mfma(src, B, Dacc, first):
        return f'v_mfma_f32_16x16x32_bf16 {vr(Dacc,4)}, {src}, {vr(B,4)}, {"0" if first else vr(Dacc,4)}'

    def publish(D0, si, sPUB):
        D1 = D0 + 4
        X = vQA
        a(f'v_lshrrev_b32 v{vT0}, 1, v{vVOFF}')
        a(f'v_add_u32 v{vT1}, s{sW512}, v{vT0}')
        a(f'v_mov_b32 v{X+2}, 1')
        a(f'v_mov_b32 v{X+3}, 0')
        a(f'v_add_f32_dpp v{X}, v{D1}, v{D0} row_ror:8 row_mask:0xf bank_mask:0x3')
        a(f'v_add_f32_dpp v{X+1}, v{D1+1}, v{D0+1} row_ror:8 row_mask:0xf bank_mask:0x3')
        a(f'v_add_f32_dpp v{X}, v{D0+2}, v{D1+2} row_ror:8 row_mask:0xf bank_mask:0xc')
        a(f'v_add_f32_dpp v{X+1}, v{D0+3}, v{D1+3} row_ror:8 row_mask:0xf bank_mask:0xc')
        a(f'ds_write_b64 v{vT1}, {vr(X,2)} offset:{si*2048}')
        a('s_mov_b64 exec, 1')
        a(f'ds_add_rtn_u32 v{X+2}, v{X+3}, v{X+2} offset:{8320 + si*4}')
        a('s_mov_b64 exec, -1')
        a('s_waitcnt lgkmcnt(0)')
        a(f'v_readfirstlane_b32 s56, v{X+2}')
        done = L('pubdone')
        a('s_and_b32 s56, s56, 3')
        a('s_cmp_lg_u32 s56, 3')
        a(f's_cbranch_scc1 {done}')
        T = vBQ
        a(f'ds_read_b128 {vr(T,4)}, v{X+3} offset:{8192 + si*32}')
        a(f'ds_read_b128 {vr(T+4,4)}, v{X+3} offset:{8192 + si*32 + 16}')
        for w in range(4):
            a(f'ds_read_b64 {vr(T+8+2*w,2)}, v{vT0} offset:{si*2048 + w*512}')
        a('s_waitcnt lgkmcnt(4)')
        M = X + 4
        a(f'v_min3_f32 v{M}, v{T}, v{T+2}, v{T+4}')
        a(f'v_min_f32 v{M}, v{M}, v{T+6}')
        for w in range(4): a(f'v_sub_f32 v{T+2*w}, v{M}, v{T+2*w}')
        for w in range(4): a(f'v_exp_f32 v{T+2*w}, v{T+2*w}')
        a('s_waitcnt lgkmcnt(0)')
        a(f'v_mul_f32 v{X}, v{T}, v{T+8}')
        a(f'v_mul_f32 v{X+1}, v{T}, v{T+9}')
        for w in range(1, 4):
            a(f'v_fmac_f32 v{X}, v{T+2*w}, v{T+8+2*w}')
            a(f'v_fmac_f32 v{X+1}, v{T+2*w}, v{T+9+2*w}')
        a(f'v_mul_f32 v{M+1}, v{T}, v{T+1}')
        for w in range(1, 4):
            a(f'v_fmac_f32 v{M+1}, v{T+2*w}, v{T+1+2*w}')
        a(f's_add_u32 s56, s{sPUB}, s{sML}')
        nl = L('pubnl')
        a(f's_cmp_eq_u32 s{sLOCAL}, 0')
        a(f's_cbranch_scc1 {nl}')
        a(f'buffer_store_dwordx2 {vr(X,2)}, v{vT0}, s[{S_WS}:{S_WS+3}], s{sPUB} offen')
        a('s_mov_b64 exec, 1')
        a(f'buffer_store_dwordx2 {vr(M,2)}, off, s[{S_WS}:{S_WS+3}], s56')
        a('s_mov_b64 exec, -1')
        a(f's_branch {done}')
        a.label(nl)
        a(f'buffer_store_dwordx2 {vr(X,2)}, v{vT0}, s[{S_WS}:{S_WS+3}], s{sPUB} offen sc1')
        a('s_mov_b64 exec, 1')
        a(f'buffer_store_dwordx2 {vr(M,2)}, off, s[{S_WS}:{S_WS+3}], s56 sc1')
        a('s_mov_b64 exec, -1')
        a.label(done)

    def compute1(R, ci):
        if ci < 37:
            k = ci; c = k // 4
            a(qk_mfma(R, k, vQA))
            if k % 4 == 3 or k == 36:
                for o in diag_ops(vP1 + c, vQA): a(o)
                if c == 9:
                    for o in kill_ops(vP1 + 9): a(o)
                if c % 2 == 1:
                    for o in round_ops(vP1 + c - 1, vP1 + c, vT0): a(o)
            if k == 36:
                softmax1(R)
        else:
            k = ci - 37; c = k // 4
            if k % 2 == 0:
                if v_in_lds(k):
                    a(f'ds_read_b128 {vr(vBQ,4)}, v{vLDS} offset:{lds_off(R,k)}')
                for o in and_ops(vB1, vP1 + c, (k % 4) // 2): a(o)
                if v_in_lds(k):
                    a('s_waitcnt lgkmcnt(0)')
                    a(pv_mfma(vr(vBQ,4), vB1, vD1, k == 0))
                else:
                    a(pv_mfma(vslot(R,k), vB1, vD1, False))
            else:
                a(pv_mfma(vslot(R,k), vB1, vD1 + 4, k == 1))

    def softmax1(R):
        nmc = vQA + 4
        max_phase(vP1, nmc, vQA + 6)
        ops = [exp_ops(vP1 + c, nmc, nmc + 1, c == 0) for c in range(10)]
        for st in range(4):
            for c in range(10): a(ops[c][st])
        ml_write(nmc, R)

    a(f's_sub_u32 s57, s{sT}, 4')
    a('s_mul_i32 s58, s57, 37')
    a('s_lshr_b32 s58, s58, 8')
    a('s_mul_i32 s59, s58, 7')
    a('s_sub_u32 s59, s57, s59')
    a(f's_lshl_b32 s60, s{sX}, 2')
    a('s_add_u32 s60, s60, s58')
    a('s_lshl_b32 s61, s59, 2')
    a(f's_add_u32 s61, s61, s{sW}')
    a('s_mul_i32 s62, s61, 9363')
    a('s_add_u32 s63, s62, 9363')
    a('s_lshr_b32 s62, s62, 8')
    a('s_lshr_b32 s63, s63, 8')
    a('s_sub_u32 s63, s63, s62')
    a(f's_lshl_b32 s{sBASE}, s60, 20')
    a('s_lshl_b32 s62, s62, 10')
    a(f's_add_u32 s{sBASE}, s{sBASE}, s62')
    a(f'v_lshlrev_b32 v{vVOFF}, 4, v0')
    a(f'v_and_b32 v{vQOFF}, 3, v0')
    a(f'v_lshlrev_b32 v{vQOFF}, 4, v{vQOFF}')
    a(f'v_lshrrev_b32 v{vT1}, 4, v0')
    a(f'v_lshl_add_u32 v{vQOFF}, v{vT1}, 6, v{vQOFF}')
    a(f'v_bfe_u32 v{vT1}, v0, 2, 2')
    a(f'v_lshl_add_u32 v{vKOFF}, v{vT1}, 8, v{vQOFF}')
    a(f's_mul_i32 s{sLDS}, s{sW}, 36864')
    a('s_waitcnt lgkmcnt(0)')
    srd(S_K, 64, 65, '0x10000000')
    vm.reset([])
    soff_known[0] = None
    for n in range(D): load(n, 0, 0)
    srd(S_V, 66, 67, '0x10000000')
    a('s_cmp_eq_u32 s63, 37')
    a('s_cselect_b32 s57, 0x10000000, 0')
    srd(S_KL, 64, 65, 's57'); srd(S_VL, 66, 67, 's57')
    a(f's_cselect_b32 s{sTAIL}, 0xfff0fff0, -1')
    a(f's_mov_b32 s{sTAIL+1}, s{sTAIL}')
    srd(S_WS, 70, 71, hex(WS_BYTES)); srd(S_DBG, 68, 69, '256')
    stamp(0, vt=vT1)
    for t in range(4):
        a(f's_mov_b32 s{sMT+2*t}, {hex(0x000f000f << (4*t))}')
        a(f's_mov_b32 s{sMT+2*t+1}, {hex(0x000f000f << (4*t))}')
    a(f'v_add_u32 v{vLDS}, s{sLDS}, v{vVOFF}')
    a(f'v_add_u32 v{vLDS}, {RING}, v{vLDS}')
    a(f'v_and_b32 v{vT1}, 1, v0')
    a(f'v_lshlrev_b32 v{vT1}, 4, v{vT1}')
    a(f'v_mov_b32 v{vQA}, 0xffff')
    a(f'v_lshlrev_b32 v{vT1}, v{vT1}, v{vQA}')
    a(f'v_bfe_u32 v{vQA}, v0, 1, 2')
    for r in range(4):
        a(f'v_cmp_eq_u32 vcc, {r}, v{vQA}')
        a(f'v_cndmask_b32 v{vMASK+r}, 0, v{vT1}, vcc')
    a(f's_lshl_b32 s{sW512}, s{sW}, 9')
    a(f's_lshl_b32 s{sW8}, s{sW}, 3')
    a('s_lshl_b32 s57, s60, 12')
    a('s_lshl_b32 s58, s59, 9')
    a(f's_add_u32 s{sPUB1}, s57, s58')
    a(f's_add_u32 s{sPUB2}, s{sPUB1}, {8*131072}')
    a(f's_lshl_b32 s{sML}, s59, 3')
    a(f's_sub_u32 s{sML}, s{sML}, s58')
    a(f's_add_u32 s{sML}, s{sML}, 3584')
    a(f's_lshl_b32 s{sQ1}, s60, 8')
    a(f's_add_u32 s{sQ1}, s{sQ1}, {QB}')
    a(f's_add_u32 s{sQ2}, s{sQ1}, {8*8192}')
    a(f's_mov_b32 s{sB}, 0')
    a(f's_mov_b32 s{sLOCAL}, 0')
    a(f's_mov_b32 s{sALT}, 0')
    a(f's_mov_b32 s{sP2D}, 0')
    a(f'v_mov_b32 v{vQA}, -1'); a(f'v_mov_b32 v{vQA+1}, -1')
    a(f'v_lshrrev_b32 v{vT1}, 1, v{vVOFF}')
    a(f's_lshl_b32 s57, s{sW}, 19')
    a(f's_add_u32 s57, s57, s{sPUB1}')
    for j in range(4):
        a(f'buffer_store_dwordx2 {vr(vQA,2)}, v{vT1}, s[{S_WS}:{S_WS+3}], s57 offen sc1'); vm.issue('init')
        if j < 3: a('s_add_u32 s57, s57, 131072')
    a(f's_lshl_b32 s57, s{sW}, 19')
    a(f's_add_u32 s57, s57, s{sPUB1}')
    a(f's_add_u32 s57, s57, s{sML}')
    a(f'v_lshlrev_b32 v{vT1}, 17, v0')
    a('s_mov_b64 exec, 15')
    a(f'buffer_store_dwordx2 {vr(vQA,2)}, v{vT1}, s[{S_WS}:{S_WS+3}], s57 offen sc1'); vm.issue('init')
    a(f'v_lshlrev_b32 v{vT1}, 2, v0')
    a(f'v_mov_b32 v{vQA+2}, 0')
    a(f'ds_write_b32 v{vT1}, v{vQA+2} offset:8320')
    a('s_mov_b64 exec, -1')

    for n in range(D, 72):
        vm.wait((0, n - D))
        if n == 48:
            a(f's_lshl_b32 s57, s{sX}, 5')
            a(f'buffer_load_dword v{vQ}, off, s[{S_DBG}:{S_DBG+3}], s57 sc1'); vm.issue('flag')
        if n == 56:
            vm.wait('flag')
            lp, chk = L('fl'), L('flc')
            a(f's_branch {chk}')
            a.label(lp)
            spin_dec()
            a('s_sleep 4')
            a(f'buffer_load_dword v{vQ}, off, s[{S_DBG}:{S_DBG+3}], s57 sc1')
            a('s_waitcnt vmcnt(0)')
            a.label(chk)
            a(f'v_readfirstlane_b32 s58, v{vQ}')
            a('s_and_b32 s59, s58, 63')
            a('s_cmp_lg_u32 s59, 32')
            a(f's_cbranch_scc1 {lp}')
            a(f's_lshl_b32 s59, s{sVAL}, 5')
            a('s_cmp_eq_u32 s58, s59')
            a(f's_cselect_b32 s{sLOCAL}, {0 if force_nonlocal else 1}, 0')
            stamp(1, vt=vT1)
        if n == 64:
            qload(sQ1, 'q1')
        load(n, 0, 0)
        if n == 2*D + 1:
            assert 'init' not in vm.q
            a('s_waitcnt lgkmcnt(0)')
            a('s_barrier')
            sk = L('noat')
            a(f's_cmp_lg_u32 s{sW}, 0')
            a(f's_cbranch_scc1 {sk}')
            a(f's_lshl_b32 s57, s{sX}, 5')
            a(f'v_mov_b32 v{vT1}, s{sVAL}')
            a('s_mov_b64 exec, 1')
            a(f'buffer_atomic_add v{vT1}, off, s[{S_DBG}:{S_DBG+3}], s57 sc1')
            a('s_mov_b64 exec, -1')
            a.label(sk)
    vm.wait('q1')
    qwait_blocking(sQ1, True)
    stamp(2, vt=vT1)
    build_bq()
    pend = list(range(72, 74 + D))
    def pro_hook(idx):
        if pend:
            n = pend.pop(0)
            if n == 74:
                a(f's_add_u32 s{sBASE}, s{sBASE}, 0x2000000'); soff_known[0] = None
                a(f's_add_u32 s{sQ1}, s{sQ1}, 8192')
                qload(sQ1, 'q1')
            vm.wait((0, n - D))
            if n < 74: load(n, 0, 0)
            else: load(n - 74, 1, 1)
    kphase_fast(0, list(range(10)), vP1, vT0, pro_hook)
    assert not pend
    softmax1(0)
    vm.wait((0, 73))
    for ci in range(37, 74): compute1(0, ci)
    publish(vD1, 0, sPUB1)
    stamp((sB, 4, 8), vt=vT1)
    a(f's_add_u32 s{sPUB1}, s{sPUB1}, 131072')
    a(f's_mov_b32 s{sB}, 1')

    def main(R):
        a.label(f'Lmain{R}')
        a.fence()
        vm.reset(['q1'] + [(0, n) for n in range(D)])
        soff_known[0] = None
        a(f's_mov_b32 s{sP2D}, 0')
        vm.wait('q1')
        qwait_blocking(sQ1, True)
        build_bq()
        polls = [c - D for c in checks]
        saved = None
        for n in range(D, 74 + D):
            if n in checks:
                sk = L('ck')
                a(f's_cmp_lg_u32 s{sP2D}, 0')
                a(f's_cbranch_scc1 {sk}')
                keep = list(vm.q)
                vm.wait(('poll', n))
                vm.q = keep
                qcheck()
                a(f's_cbranch_vccnz {sk}')
                a(f's_call_b64 s[{sRET}:{sRET+1}], Lp2_{1-R}')
                a.label(sk)
                a.fence()
            if n == 74:
                saved = list(vm.q)
                a(f's_add_u32 s{sBASE}, s{sBASE}, 0x2000000'); soff_known[0] = None
                a(f's_add_u32 s{sQ1}, s{sQ1}, 8192')
                if R == 1:
                    a(f's_cmp_eq_u32 s{sB}, 7')
                    a(f's_cbranch_scc1 Lalt{R}')
                a(f's_cmp_eq_u32 s{sP2D}, 0')
                a(f's_cbranch_scc1 Lalt{R}')
                qload(sQ1, 'q1')
            vm.wait((0, n - D))
            if n in polls: qload(sQ2, ('poll', n + D))
            if n < 74: load(n, R, 0)
            else: load(n - 74, 1 - R, 1)
            compute1(R, n - D)
        publish(vD1, R, sPUB1)
        stamp((sB, 4, 8), vt=vT1)
        a(f's_add_u32 s{sPUB1}, s{sPUB1}, 131072')
        a(f's_add_u32 s{sB}, s{sB}, 1')
        a(f's_branch Lmain{1-R}')
        a.label(f'Lalt{R}')
        a.fence()
        vm.reset(saved)
        for ci in range(74 - D, 74):
            vm.wait((0, ci))
            compute1(R, ci)
        publish(vD1, R, sPUB1)
        stamp((sB, 4, 8), vt=vT1)
        stamp((sB, 4, 11), vt=vT1)
        a(f's_add_u32 s{sPUB1}, s{sPUB1}, 131072')
        a(f's_add_u32 s{sB}, s{sB}, 1')
        if R == 1:
            a(f's_cmp_eq_u32 s{sB}, 8')
            a('s_cbranch_scc1 Lfin')
        qwait_blocking(sQ2, False)
        a(f's_mov_b32 s{sALT}, 1')
        a(f's_call_b64 s[{sRET}:{sRET+1}], Lp2_{1-R}')
        a(f's_mov_b32 s{sALT}, 0')
        a(f's_branch Lmain{1-R}')

    main(1)
    main(0)

    a.label('Lfin')
    a.fence()
    sk = L('fin')
    a(f's_cmp_lg_u32 s{sP2D}, 0')
    a(f's_cbranch_scc1 {sk}')
    qwait_blocking(sQ2, False)
    a(f's_call_b64 s[{sRET}:{sRET+1}], Lp2_0')
    a.label(sk)
    a.fence()
    qwait_blocking(sQ2, False)
    a(f's_call_b64 s[{sRET}:{sRET+1}], Lp2_1')
    a('s_endpgm')

    def p2(R):
        a.label(f'Lp2_{R}')
        a.fence()
        if stamps:
            a(f's_lshr_b32 s89, s{sPUB2}, 17'); a('s_sub_u32 s89, s89, 8')
        stamp((89, 4, 9), vt=vT1)
        base = 64 + 96*R
        S = base + 32
        nmc = S + 10; u = S + 12; t2 = S + 13
        Dacc = base + 48; Bb = base + 56
        TT = base + 64
        build_bq()
        ldsq = [k for k in range(0, 36, 2)]
        issued = []
        def rd():
            k = ldsq.pop(0)
            a(f'ds_read_b128 {vr(TT + 4*((k//2) % 8), 4)}, v{vLDS} offset:{lds_off(R,k)}')
            issued.append(k)
        def hook(idx):
            if idx == 2:
                sk = L('p2alt')
                a(f's_cmp_eq_u32 s{sALT}, 0')
                a(f's_cbranch_scc1 {sk}')
                keepq = list(vm.q); soff_known[0] = None
                qload(sQ1, None)
                for n in range(D): load(n, R, 9)
                vm.q = keepq
                a.label(sk)
            if idx >= 6 and idx < 10:
                rd(); rd()
        kphase_fast(R, [2, 0, 1, 3, 4, 5, 6, 7, 8, 9], S, u, hook)
        max_phase(S, nmc, t2)
        for o in exp_ops(S, nmc, nmc + 1, True): a(o)
        eq = [o for c in range(1, 10) for o in exp_ops(S + c, nmc, nmc + 1, False)]
        for o in and_ops(Bb, S, 0): a(o)
        for m in range(19):
            B = Bb + 4*(m % 2); Bn = Bb + 4*((m+1) % 2)
            nxt = and_ops(Bn, S + (m+1)//2, (m+1) % 2) if m < 18 else []
            k0 = 2*m
            if m % 2 == 0:
                for _ in range(4):
                    if eq: a(eq.pop(0))
            if m < 18:
                cnt = len(issued) - 1 - issued.index(k0)
                a(f's_waitcnt lgkmcnt({cnt})')
                a(pv_mfma(vr(TT + 4*(m % 8), 4), B, Dacc, m == 0))
                a(nxt[0]); a(nxt[1])
                a(pv_mfma(vslot(R, k0 + 1), B, Dacc + 4, m == 0))
                a(nxt[2]); a(nxt[3])
                if ldsq: rd()
            else:
                a(pv_mfma(vslot(R, 36), B, Dacc, False))
        ml_write(nmc, 2 + R)
        publish(Dacc, 2 + R, sPUB2)
        stamp((89, 4, 10), vt=vT1)
        a(f's_add_u32 s{sPUB2}, s{sPUB2}, 131072')
        a(f's_add_u32 s{sQ2}, s{sQ2}, 8192')
        a(f's_mov_b32 s{sP2D}, 1')
        a(f's_setpc_b64 s[{sRET}:{sRET+1}]')
    p2(0); p2(1)

    from gen_chain import chain
    chain(a, locals())

    a.label('Lend')
    a('s_endpgm')
    a.raw('.section .rodata,"a"')
    a.raw('.p2align 6')
    a.raw(f'.amdhsa_kernel {NAME}_kernel')
    a.raw('  .amdhsa_next_free_vgpr 512')
    a.raw('  .amdhsa_next_free_sgpr 102')
    a.raw('  .amdhsa_accum_offset 256')
    a.raw('  .amdhsa_group_segment_fixed_size 0')
    a.raw('  .amdhsa_kernarg_size 96')
    a.raw('  .amdhsa_user_sgpr_count 2')
    a.raw('  .amdhsa_user_sgpr_kernarg_segment_ptr 1')
    a.raw('  .amdhsa_system_sgpr_workgroup_id_x 1')
    a.raw('  .amdhsa_float_denorm_mode_32 3')
    a.raw('.end_amdhsa_kernel')
    return a

if __name__ == '__main__':
    import argparse
    ap = argparse.ArgumentParser()
    ap.add_argument('-o', default=f'cdna_kernels/{NAME}.s')
    ap.add_argument('-D', type=int, default=8)
    ap.add_argument('--stamps', action='store_true')
    ap.add_argument('--spin', type=int, default=SPIN)
    ap.add_argument('--nonlocal', dest='nl', action='store_true')
    args = ap.parse_args()
    a = gen(D=args.D, stamps=args.stamps, force_nonlocal=args.nl, spin=args.spin)
    open(args.o, 'w').write(a.text())
    print('instrs', a.nins, 'auto nops', a.nnop, 'bytes', len(a.text()))
```

```python
from asmlib import vr
import gen as G

def chain(a, env):
    f32 = G.f32; DPPF = G.DPPF
    L = env['L']; srd = env['srd']; stamp = env['stamp']; spin_dec = env['spin_dec']
    S_WS = env['S_WS']; S_DBG = env['S_DBG']
    sX, sT, sW, sVAL, sLOCAL, sHI = (env[k] for k in ('sX', 'sT', 'sW', 'sVAL', 'sLOCAL', 'sHI'))
    force_nonlocal = env['force_nonlocal']; local_or = env['local_or']; lpoll = env['lpoll']
    vm = G.VM(a)
    WS = f's[{S_WS}:{S_WS+3}]'

    S_WQ, S_G, S_U, S_XI, S_WO, S_WD, S_OUT = 4, 8, 12, 16, 40, 44, 48
    sS, sJA, sJB, sP2W, sP2R, sHW, sQW, sDES, sOUTO = 28, 29, 30, 31, 34, 35, 36, 37, 38
    sM2 = 52
    sM1 = 54
    vBF, vL16, vL8, vST, vH, vHS, vQS, vXR, vXW, vOW, vML, vSTW, vSTR = range(1, 14)
    vTa, vTb = 14, 15
    vX = 16; vD = 20; vR = 28; vTc = 30; vTd = 31; vB = 32
    XR = 0; XB = 18432; XS = 1056; STATS = 26880; STG = 32768
    OB = XB; XB1 = XB + 2*XS; XB2 = XB + 4*XS
    def wq(t, c): return vr(4*(2*c + t), 4, 'a')
    def wo(t, c): return vr(128 + 4*(2*c + t), 4, 'a')
    def wg(c): return vr(80 + 4*c, 4)
    def wu(c): return vr(144 + 4*c, 4)
    def wd(t, c): return vr(208 + 4*(2*c + t), 4)

    def exec_set(lo, hi):
        a(f's_mov_b32 exec_lo, {lo}'); a(f's_mov_b32 exec_hi, {hi}')
    def exec_all(): a('s_mov_b64 exec, -1')

    a.label('Lchain')
    a('s_load_dwordx2 s[72:73], s[0:1], 0')
    a('s_load_dwordx4 s[76:79], s[0:1], 24')
    a('s_load_dwordx8 s[80:87], s[0:1], 48')
    a(f'v_lshlrev_b32 v{vL16}, 4, v0')
    a(f'v_lshlrev_b32 v{vL8}, 3, v0')
    a(f'v_lshrrev_b32 v{vTa}, 4, v0')
    a(f'v_and_b32 v{vTb}, 15, v0')
    a(f's_lshl_b32 s57, s{sX}, 2')
    a(f's_add_u32 s57, s57, s{sT}')
    a('s_waitcnt lgkmcnt(0)')
    srd(S_WS, 70, 71, hex(G.WS_BYTES)); srd(S_XI, 72, 73, '8192')
    srd(S_WQ, 76, 77, '0x400000')
    a(f'v_lshlrev_b32 v{vTc}, 5, v0')
    a(f's_lshl_b32 s58, s{sW}, 11')
    a(f'buffer_load_dwordx4 {vr(vB,4)}, v{vTc}, s[{S_XI}:{S_XI+3}], s58 offen'); vm.issue('x')
    a(f'buffer_load_dwordx4 {vr(vB+4,4)}, v{vTc}, s[{S_XI}:{S_XI+3}], s58 offen offset:16'); vm.issue('x')
    for r in range(4): a(f'v_mov_b32 v{vD+r}, -1')
    a(f's_lshl_b32 s58, s{sT}, 13'); a(f's_lshl_b32 s59, s{sX}, 10')
    a(f's_add_u32 s{sP2W}, s58, s59'); a(f's_add_u32 s{sP2W}, s{sP2W}, {G.P2B}')
    a(f's_lshl_b32 s58, s{sW}, 15'); a(f's_add_u32 s58, s58, s{sP2W}')
    for k in range(5):
        a(f'buffer_store_dwordx4 {vr(vD,4)}, v{vL16}, {WS}, s58 offen sc1'); vm.issue('init')
        if k < 4: a('s_add_u32 s58, s58, 0x20000')
    a(f's_add_u32 s{sHW}, s59, {G.HB}')
    a(f's_lshl_b32 s58, s{sT}, 2'); a(f's_add_u32 s58, s58, s{sW}'); a('s_lshl_b32 s58, s58, 13')
    a(f's_add_u32 s58, s58, s{sHW}')
    a(f'buffer_store_dwordx4 {vr(vD,4)}, v{vL16}, {WS}, s58 offen sc1'); vm.issue('init')
    a(f's_lshl_b32 s{sQW}, s57, 8'); a(f's_add_u32 s{sQW}, s{sQW}, {G.QB}')
    a(f'v_lshlrev_b32 v{vTc}, 13, v{vTa}')
    a(f'v_lshl_add_u32 v{vTc}, v{vTb}, 4, v{vTc}')
    a(f's_lshl_b32 s58, s{sW}, 15'); a(f's_add_u32 s58, s58, s{sQW}')
    a(f'buffer_store_dwordx4 {vr(vD,4)}, v{vTc}, {WS}, s58 offen sc1'); vm.issue('init')

    vCB = 64
    vWA = 65; vWB = 66; vWT = 67; vTR0 = 68; vTR1 = 69; vGU = 70; vTA0 = 71; vTA1 = 72
    a(f'v_lshrrev_b32 v{vCB}, 1, v{vTb}')
    a(f'v_xor_b32 v{vCB}, v{vCB}, v{vTa}')
    a(f'v_lshlrev_b32 v{vCB}, 5, v{vCB}')
    a(f'v_and_b32 v{vWT}, 1, v{vTb}')
    a(f'v_lshl_add_u32 v{vCB}, v{vWT}, 4, v{vCB}')
    a(f's_lshl_b32 s60, s{sW}, 13'); a(f's_add_u32 s60, s60, {STG}')

    def wide_setup(log2stride, sbase, rows_per_wave):
        a(f's_mul_i32 s58, s{sW}, {rows_per_wave << log2stride}')
        a(f's_add_u32 s58, s58, s{sbase}')
        a(f'v_lshl_add_u32 v{vWA}, v{vTa}, {log2stride}, v{vCB}')
        a(f'v_xor_b32 v{vWB}, 128, v{vWA}')
        a(f'v_add_u32 v{vWA}, s58, v{vWA}')
        a(f'v_add_u32 v{vWB}, s58, v{vWB}')

    def issue_task(k):
        slot = k % 4
        if k < 8:
            S = S_WQ if k < 4 else S_WO
            ls = 13 if k < 4 else 10
            if k == 0:
                a('s_lshl_b32 s59, s57, 8'); wide_setup(13, 59, 32)
            if k == 4:
                a(f's_lshl_b32 s59, s{sX}, 19'); a(f's_lshl_b32 s61, s{sT}, 8'); a('s_add_u32 s59, s59, s61')
                wide_setup(10, 59, 32)
            for m in range(8):
                src = vWA if (m >> 1) & 1 == 0 else vWB
                a(f's_add_u32 m0, s60, {slot*32768 + m*1024}')
                a(f'v_add_u32 v{vWT}, {((k % 4)*128 + 4*m) << ls}, v{src}')
                a(f'buffer_load_dwordx4 v{vWT}, s[{S}:{S+3}], 0 offen nt lds'); vm.issue(('t', k))
        elif k < 12:
            S = S_G if k < 10 else S_U
            for m in range(8):
                c = (k % 2)*8 + m
                a(f's_add_u32 m0, s60, {slot*32768 + m*1024}')
                a(f'v_add_u32 v{vWT}, {c*32*2752}, v{vGU}')
                a(f'buffer_load_dwordx4 v{vWT}, s[{S}:{S+3}], 0 offen lds'); vm.issue(('t', k))
        else:
            if k == 12:
                a(f's_mul_i32 s59, s{sX}, {192*1024}'); a(f's_lshl_b32 s61, s{sT}, 8'); a('s_add_u32 s59, s59, s61')
                wide_setup(10, 59, 32)
                for m in range(8):
                    src = vWA if (m >> 1) & 1 == 0 else vWB
                    a(f's_add_u32 m0, s60, {slot*32768 + m*1024}')
                    a(f'v_add_u32 v{vWT}, {(4*m) << 10}, v{src}')
                    a(f'buffer_load_dwordx4 v{vWT}, s[{S_WD}:{S_WD+3}], 0 offen nt lds'); vm.issue(('t', k))
            else:
                wide_setup(10, 59, 16)
                a(f's_lshl_b32 s61, s{sW}, 12')
                for m in range(4):
                    src = vWA if (m >> 1) & 1 == 0 else vWB
                    a(f's_add_u32 m0, s61, {STG + slot*32768 + m*1024}')
                    a(f'v_add_u32 v{vWT}, {(128 + 4*m) << 10}, v{src}')
                    a(f'buffer_load_dwordx4 v{vWT}, s[{S_WD}:{S_WD+3}], 0 offen nt lds'); vm.issue(('t', k))

    def half(reg, h):
        k = reg[0]; lo = int(reg[2:reg.index(':')])
        return vr(lo + 2*h, 2, k)

    def read_task(k):
        slot = k % 4
        if k < 8 or k >= 12:
            a(f'v_add_u32 v{vTA0}, {STG + slot*32768}, v{vTR0}')
            a(f'v_add_u32 v{vTA1}, {STG + slot*32768}, v{vTR1}')
            ncs = 2 if k == 13 else 4
            n = 0
            for cc in range(ncs):
                for t in range(2):
                    if k < 4: fr = wq(t, 4*k + cc)
                    elif k < 8: fr = wo(t, 4*(k-4) + cc)
                    else: fr = wd(t, 4*(k-12) + cc)
                    for h in range(2):
                        a(f'ds_read_b64_tr_b16 {half(fr,h)}, v{vTA0 + t} offset:{cc*8192 + h*1024}')
                        n += 1
                        if n == 12: a('s_waitcnt lgkmcnt(4)')
        else:
            a(f'v_add_u32 v{vTA0}, s60, v{vL8}')
            a(f'v_add_u32 v{vTA0}, {slot*32768}, v{vTA0}')
            n = 0
            for m in range(8):
                c = (k % 2)*8 + m
                fr = wg(c) if k < 10 else wu(c)
                for h in range(2):
                    a(f'ds_read_b64_tr_b16 {half(fr,h)}, v{vTA0} offset:{m*1024 + h*512}')
                    n += 1
                    if n == 12: a('s_waitcnt lgkmcnt(4)')
        a('s_waitcnt lgkmcnt(0)')

    srd(S_DBG, 68, 69, '256')
    issue_task(0); issue_task(1)
    vm.wait('init')
    a('s_barrier')
    sk = L('cat')
    a(f's_cmp_lg_u32 s{sW}, 0'); a(f's_cbranch_scc1 {sk}')
    a(f's_lshl_b32 s58, s{sX}, 5'); a(f'v_mov_b32 v{vTc}, s{sVAL}')
    a('s_mov_b64 exec, 1')
    a(f'buffer_atomic_add v{vTc}, off, s[{S_DBG}:{S_DBG+3}], s58 sc1')
    exec_all()
    a.label(sk)
    issue_task(2); issue_task(3)
    stamp(0, vt=vTc)

    srd(S_WO, 78, 79, '0x400000'); srd(S_WD, 84, 85, hex(1376*1024)); srd(S_OUT, 86, 87, '8192')
    a(f's_mul_i32 s58, s{sX}, 12'); a(f's_mul_i32 s59, s{sT}, 3'); a(f's_add_u32 s59, s59, s{sW}')
    a('s_add_u32 s58, s58, s59')
    a('s_cmp_lt_u32 s58, 86'); a(f's_cselect_b32 s61, {512*2752}, 0')
    a(f's_cmp_lt_u32 s{sW}, 3'); a('s_cselect_b32 s61, s61, 0')
    srd(S_G, 80, 81, 's61'); srd(S_U, 82, 83, 's61')
    a(f'v_bfe_u32 v{vGU}, v0, 3, 2'); a(f'v_lshlrev_b32 v{vGU}, 3, v{vGU}')
    a(f'v_lshrrev_b32 v{vWT}, 5, v0'); a(f'v_lshl_add_u32 v{vGU}, v{vWT}, 2, v{vGU}')
    a(f'v_bfe_u32 v{vWT}, v0, 1, 2'); a(f'v_add_u32 v{vGU}, v{vGU}, v{vWT}')
    a(f'v_mul_u32_u24 v{vGU}, 2752, v{vGU}')
    a(f'v_and_b32 v{vWT}, 1, v0'); a(f'v_lshl_add_u32 v{vGU}, v{vWT}, 4, v{vGU}')
    a('s_lshl_b32 s58, s58, 5'); a(f'v_add_u32 v{vGU}, s58, v{vGU}')
    a(f'v_lshrrev_b32 v{vTc}, 2, v{vTb}')
    a(f'v_and_b32 v{vTd}, 1, v{vTa}'); a(f'v_lshl_add_u32 v{vTd}, v{vTd}, 2, v{vTc}')
    a(f's_lshl_b32 s58, s{sW}, 1')
    a(f'v_xor_b32 v{vTd}, s58, v{vTd}')
    a(f'v_lshl_add_u32 v{vTc}, v{vTa}, 3, v{vTc}')
    a(f'v_lshlrev_b32 v{vTc}, 8, v{vTc}')
    a(f'v_lshl_add_u32 v{vTR0}, v{vTd}, 5, v{vTc}')
    a(f'v_and_b32 v{vTc}, 3, v{vTb}'); a(f'v_lshl_add_u32 v{vTR0}, v{vTc}, 3, v{vTR0}')
    a(f'v_xor_b32 v{vTR1}, 32, v{vTR0}')
    a(f'v_lshlrev_b32 v{vHS}, 9, v{vTb}'); a(f'v_lshl_add_u32 v{vHS}, v{vTa}, 3, v{vHS}')
    a('s_lshl_b32 s58, s59, 5'); a(f'v_add_u32 v{vHS}, s58, v{vHS}')
    a(f'v_lshlrev_b32 v{vST}, 9, v{vTb}'); a(f'v_lshl_add_u32 v{vST}, v{vTa}, 4, v{vST}')
    a(f's_lshl_b32 s58, s{sW}, 7'); a(f'v_add_u32 v{vST}, s58, v{vST}')
    a(f'v_lshlrev_b32 v{vQS}, 13, v{vTb}'); a(f'v_lshl_add_u32 v{vQS}, v{vTa}, 3, v{vQS}')
    a(f's_lshl_b32 s58, s{sW}, 6'); a(f'v_add_u32 v{vQS}, s58, v{vQS}')
    a(f'v_and_b32 v{vTc}, 1, v{vTb}')
    a(f'v_lshlrev_b32 v{vH}, 9, v{vTc}'); a(f'v_lshl_add_u32 v{vH}, v{vTa}, 4, v{vH}')
    a(f'v_and_b32 v{vTd}, 7, v{vTb}'); a(f'v_mul_u32_u24 v{vBF}, {XS}, v{vTd}'); a(f'v_lshl_add_u32 v{vBF}, v{vTa}, 4, v{vBF}')
    a(f'v_cmp_eq_u32 vcc, 7, v{vTd}'); a(f'v_cndmask_b32 v{vML}, v{vTd}, 0, vcc')
    a(f'v_lshlrev_b32 v{vML}, 3, v{vML}'); a(f'v_add_u32 v{vML}, 3584, v{vML}')
    a(f'v_lshrrev_b32 v{vOW}, 3, v{vTb}'); a(f'v_lshl_add_u32 v{vOW}, v{vOW}, 4, v{vTd}'); a(f'v_lshl_add_u32 v{vOW}, v{vTa}, 5, v{vOW}')
    a(f'v_lshlrev_b32 v{vOW}, 1, v{vOW}'); a(f's_lshl_b32 s58, s{sW}, 8'); a(f'v_add_u32 v{vOW}, s58, v{vOW}')
    a(f'v_and_b32 v{vTc}, 31, v0'); a(f'v_lshlrev_b32 v{vTc}, 3, v{vTc}'); a(f'v_add_u32 v{vTc}, s58, v{vTc}')
    a(f'v_lshrrev_b32 v{vTd}, 5, v0')
    a(f'v_lshl_add_u32 v{vXR}, v{vTd}, 13, v{vTc}')
    a(f'v_mul_u32_u24 v{vXW}, {XS}, v{vTd}'); a(f'v_add_u32 v{vXW}, v{vXW}, v{vTc}')
    a(f'v_lshlrev_b32 v{vSTR}, 5, v{vTd}')
    a(f's_lshl_b32 s58, s{sW}, 3'); a(f'v_add_u32 v{vSTW}, s58, v{vSTR}')
    a(f's_mov_b32 s{sM2}, 0x00030003'); a(f's_mov_b32 s{sM2+1}, 0x00030003')
    a(f's_mov_b32 s{sM1}, 0x00010001'); a(f's_mov_b32 s{sM1+1}, 0x00010001')

    def ln_finish(s1, s2, u):
        a(f'v_mul_f32 v{s1}, {f32(1/512)}, v{s1}')
        a(f'v_mul_f32 v{s2}, {f32(1/512)}, v{s2}')
        a(f'v_fma_f32 v{s2}, -v{s1}, v{s1}, v{s2}')
        a(f'v_max_f32 v{s2}, 0, v{s2}')
        a(f'v_cvt_pk_bf16_f32 v{u}, v{s1}, v{s2}')
        a(f'v_and_b32 v{s2}, s{sHI}, v{u}')
        a(f'v_lshlrev_b32 v{s1}, 16, v{u}')
        a(f'v_add_f32 v{s2}, {f32(1e-5)}, v{s2}')
        a(f'v_cvt_pk_bf16_f32 v{u}, v{s2}, v{s2}')
        a(f'v_and_b32 v{s2}, s{sHI}, v{u}')
        a(f'v_sqrt_f32 v{s2}, v{s2}')
        return [f'v_cvt_pk_bf16_f32 v{u}, v{s2}, v{s2}', f'v_and_b32 v{s2}, s{sHI}, v{u}', f'v_rcp_f32 v{s2}, v{s2}']

    def normalize(xs, ds, outs, mb, rs, tail):
        n = len(xs)
        for i in range(n): a(f'v_sub_f32 v{ds[i]}, v{xs[i]}, v{mb}')
        for o in tail: a(o)
        for i in range(0, n, 2): a(f'v_cvt_pk_bf16_f32 v{outs[i//2]}, v{ds[i]}, v{ds[i+1]}')
        for i in range(0, n, 2):
            a(f'v_lshlrev_b32 v{ds[i]}, 16, v{outs[i//2]}'); a(f'v_and_b32 v{ds[i+1]}, s{sHI}, v{outs[i//2]}')
        for i in range(n): a(f'v_mul_f32 v{ds[i]}, v{ds[i]}, v{rs}')
        for i in range(0, n, 2): a(f'v_cvt_pk_bf16_f32 v{outs[i//2]}, v{ds[i]}, v{ds[i+1]}')

    def row16_sum2(p, q):
        for pat in ('quad_perm:[1,0,3,2]', 'quad_perm:[2,3,0,1]', 'row_half_mirror', 'row_mirror'):
            a(f'v_add_f32_dpp v{p}, v{p}, v{p} {pat} {DPPF}')
            a(f'v_add_f32_dpp v{q}, v{q}, v{q} {pat} {DPPF}')

    vm.wait('x')
    a(f'v_lshlrev_b32 v{vTc}, 5, v0'); a(f's_lshl_b32 s58, s{sW}, 11'); a(f'v_add_u32 v{vTc}, s58, v{vTc}')
    a(f'ds_write_b128 v{vTc}, {vr(vB,4)} offset:{XR}')
    a(f'ds_write_b128 v{vTc}, {vr(vB+4,4)} offset:{XR+16}')
    a(f'v_mov_b32 v{vD+4}, 0'); a(f'v_mov_b32 v{vD+5}, 0')
    a(f's_lshl_b32 s58, s{sW}, 9'); a(f'v_add_u32 v{vTc}, s58, v{vL8}')
    a(f'ds_write_b64 v{vTc}, {vr(vD+4,2)} offset:{XR+8192}')
    xs = list(range(vB+8, vB+24))
    for i in range(8):
        a(f'v_lshlrev_b32 v{xs[2*i]}, 16, v{vB+i}'); a(f'v_and_b32 v{xs[2*i+1]}, s{sHI}, v{vB+i}')
    s1, s2, u = vX, vX+1, vX+2
    a(f'v_add_f32 v{s1}, v{xs[0]}, v{xs[1]}'); a(f'v_mul_f32 v{s2}, v{xs[0]}, v{xs[0]}'); a(f'v_fmac_f32 v{s2}, v{xs[1]}, v{xs[1]}')
    for i in range(2, 16):
        a(f'v_add_f32 v{s1}, v{s1}, v{xs[i]}'); a(f'v_fmac_f32 v{s2}, v{xs[i]}, v{xs[i]}')
    row16_sum2(s1, s2)
    a(f'ds_swizzle_b32 v{vTc}, v{s1} offset:0x401F'); a(f'ds_swizzle_b32 v{vTd}, v{s2} offset:0x401F')
    a('s_waitcnt lgkmcnt(0)')
    a(f'v_add_f32 v{s1}, v{s1}, v{vTc}'); a(f'v_add_f32 v{s2}, v{s2}, v{vTd}')
    tail = ln_finish(s1, s2, u)
    normalize(xs, xs, list(range(vB, vB+8)), s1, s2, tail)
    a(f'v_lshrrev_b32 v{vTd}, 5, v0'); a(f'v_mul_u32_u24 v{vTd}, {XS}, v{vTd}')
    a(f'v_and_b32 v{vTc}, 31, v0'); a(f'v_lshl_add_u32 v{vTc}, v{vTc}, 5, v{vTd}')
    a(f's_mul_i32 s58, s{sW}, {2*XS}'); a(f'v_add_u32 v{vTc}, s58, v{vTc}')
    a(f'ds_write_b128 v{vTc}, {vr(vB,4)} offset:{XB}')
    a(f'ds_write_b128 v{vTc}, {vr(vB+4,4)} offset:{XB+16}')
    a('s_waitcnt lgkmcnt(0)')

    def gemv(off, chains, nk=16, ring=12):
        for c in range(min(ring, nk)):
            a(f'ds_read_b128 {vr(vB+4*c,4)}, v{vBF} offset:{off + c*64}')
        issued = min(ring, nk)
        for c in range(nk):
            a(f's_waitcnt lgkmcnt({issued - 1 - c})')
            for (Dr, fn) in chains:
                a(f'v_mfma_f32_16x16x32_bf16 {vr(Dr,4)}, {fn(c)}, {vr(vB+4*(c % ring),4)}, {"0" if c == 0 else vr(Dr,4)}')
            if issued < nk:
                a(f'ds_read_b128 {vr(vB+4*(issued % ring),4)}, v{vBF} offset:{off + issued*64}')
                issued += 1

    def q_store(mask_lo, flagged):
        for t in range(2):
            a(f'v_cvt_pk_bf16_f32 v{vD+4*t}, v{vD+4*t}, v{vD+4*t+1}')
            a(f'v_cvt_pk_bf16_f32 v{vD+4*t+1}, v{vD+4*t+2}, v{vD+4*t+3}')
        for t in range(2):
            a(f'v_min_u32 v{vD+4*t}, -2, v{vD+4*t}'); a(f'v_min_u32 v{vD+4*t+1}, -2, v{vD+4*t+1}')
        exec_set(mask_lo, mask_lo)
        def st(fl):
            for t in range(2):
                a(f'buffer_store_dwordx2 {vr(vD+4*t,2)}, v{vQS}, {WS}, s{sQW} offen offset:{t*32} {fl}')
        if flagged: local_or_sc1(st)
        else: st('sc1')
        exec_all()

    def local_or_sc1(st):
        nl, dn = L('nl'), L('dn')
        a(f's_cmp_eq_u32 s{sLOCAL}, 0'); a(f's_cbranch_scc1 {nl}')
        st(''); a(f's_branch {dn}')
        a.label(nl); st('sc1'); a.label(dn)

    NT = 14
    for k in range(NT):
        vm.wait(('t', k))
        a('s_barrier')
        if k >= 4 and k + 3 < NT: issue_task(k + 3)
        if k == 5:
            a(f'v_and_b32 v{vTc}, 1, v0'); a(f'v_mul_u32_u24 v{vBF}, {XS}, v{vTc}'); a(f'v_lshl_add_u32 v{vBF}, v{vTa}, 4, v{vBF}')
            a(f'v_mov_b32 v{vTc}, 0'); a(f's_lshl_b32 s58, s{sW}, 8')
            a(f'v_lshl_add_u32 v{vTd}, v0, 2, s58')
            a(f'ds_write_b32 v{vTd}, v{vTc} offset:{OB + XS}')
        read_task(k)
        if k == 3:
            gemv(XB, [(vD, lambda c: wq(0, c)), (vD+4, lambda c: wq(1, c))], ring=8)
            q_store('0x00ff00ff', False)
            a(f's_add_u32 s{sQW}, s{sQW}, {8*8192}')
            stamp(1, vt=vTc)
            for kk in (4, 5, 6): issue_task(kk)
    stamp(2, vt=vTc)

    lp = L('cfl')
    a(f'v_and_b32 v{vTc}, 7, v0'); a(f'v_lshlrev_b32 v{vTc}, 5, v{vTc}')
    a.label(lp)
    spin_dec()
    a(f'buffer_load_dword v{vTd}, v{vTc}, s[{S_DBG}:{S_DBG+3}], 0 offen sc1')
    a('s_waitcnt vmcnt(0)')
    a(f'v_and_b32 v{vB}, 63, v{vTd}')
    a(f'v_cmp_ne_u32 vcc, 32, v{vB}')
    a(f's_cbranch_vccnz {lp}')
    a(f'v_readlane_b32 s58, v{vTd}, s{sX}')
    a(f's_lshl_b32 s59, s{sVAL}, 5')
    a('s_cmp_eq_u32 s58, s59')
    a(f's_cselect_b32 s{sLOCAL}, {0 if force_nonlocal else 1}, 0')
    stamp(3, vt=vTc)

    a(f's_mov_b32 s{sS}, 0')
    a(f's_lshl_b32 s58, s{sX}, 2'); a(f's_add_u32 s58, s58, s{sW}')
    a(f's_lshl_b32 s{sJA}, s58, 12')
    a(f's_add_u32 s{sJB}, s{sJA}, {6*131072}')
    a(f's_lshl_b32 s{sP2R}, s{sW}, 13'); a(f's_add_u32 s{sP2R}, s{sP2R}, {G.P2B}')
    a(f's_mov_b32 s{sDES}, s2')
    a(f's_mov_b32 s{sOUTO}, {(-2048) & 0xffffffff}')

    def combine(sJ, row):
        lp, ok = L('cb'), L('cbok')
        ML = vB; O = vB + 2; M = vB + 16; W = vB + 17; Ls = vB + 18; A = vB + 20
        a.label(lp)
        spin_dec()
        def lds_(fl):
            a(f'buffer_load_dwordx2 {vr(ML,2)}, v{vML}, {WS}, s{sJ} offen {fl}')
            for s in range(7):
                a(f'buffer_load_dwordx2 {vr(O+2*s,2)}, v{vL8}, {WS}, s{sJ} offen offset:{s*512} {fl}')
        local_or(lds_, lpoll, 'sc1')
        a('s_waitcnt vmcnt(7)')
        a(f'v_max_u32 v{M}, v{ML}, v{ML+1}')
        a(f'v_cmp_eq_u32 vcc, -1, v{M}')
        a(f's_cbranch_vccnz {lp}')
        exec_set('0x80808080', '0x80808080')
        a(f'v_mov_b32 v{ML}, 0x7f800000')
        exec_all()
        a(f'v_min_f32_dpp v{M}, v{ML}, v{ML} quad_perm:[1,0,3,2] {DPPF}')
        a(f'v_min_f32_dpp v{M}, v{M}, v{M} quad_perm:[2,3,0,1] {DPPF}')
        a(f'v_min_f32_dpp v{M}, v{M}, v{M} row_half_mirror {DPPF}')
        a(f'v_sub_f32 v{W}, v{M}, v{ML}')
        a(f'v_exp_f32 v{W}, v{W}')
        a(f'v_mul_f32 v{Ls}, v{W}, v{ML+1}')
        a('s_waitcnt vmcnt(0)')
        lch = [f'v_add_f32_dpp v{Ls}, v{Ls}, v{Ls} quad_perm:[1,0,3,2] {DPPF}',
               f'v_add_f32_dpp v{Ls}, v{Ls}, v{Ls} quad_perm:[2,3,0,1] {DPPF}',
               f'v_add_f32_dpp v{Ls}, v{Ls}, v{Ls} row_half_mirror {DPPF}',
               f'v_rcp_f32 v{Ls}, v{Ls}']
        for s in range(7):
            op = 'v_mul_f32_dpp' if s < 2 else 'v_fmac_f32_dpp'
            for e in range(2):
                a(f'{op} v{A + 2*(s % 2) + e}, v{W}, v{O+2*s+e} row_newbcast:{s} {DPPF}')
            if lch: a(lch.pop(0))
        a(f'v_add_f32 v{A}, v{A}, v{A+2}'); a(f'v_add_f32 v{A+1}, v{A+1}, v{A+3}')
        a(f'v_mul_f32 v{A}, v{A}, v{Ls}'); a(f'v_mul_f32 v{A+1}, v{A+1}, v{Ls}')
        a(f'v_cmp_u_f32 vcc, v{A}, v{A+1}')
        a(f'v_cvt_pk_bf16_f32 v{A}, v{A}, v{A+1}')
        a(f's_cbranch_vccz {ok}')
        a(f'v_max_u32 v{M}, v{O}, v{O+1}')
        for s in range(1, 7): a(f'v_max3_u32 v{M}, v{M}, v{O+2*s}, v{O+2*s+1}')
        a(f'v_cmp_eq_u32 vcc, -1, v{M}')
        a(f's_cbranch_vccnz {lp}')
        a.label(ok)
        a(f'ds_write_b16 v{vOW}, v{A} offset:{OB + row*XS}')
        a(f'ds_write_b16_d16_hi v{vOW}, v{A} offset:{OB + row*XS + 16}')

    def part_store(extra):
        a(f's_add_u32 s58, s{sP2W}, {extra}')
        a(f's_mov_b64 exec, s[{sM2}:{sM2+1}]')
        for t in range(2):
            a(f'buffer_store_dwordx4 {vr(vD+4*t,4)}, v{vST}, {WS}, s58 offen offset:{t*64} sc1')
        exec_all()

    def hop(extra):
        lp, ok = L('hp'), L('hpok')
        Sm = vB + 32
        a(f's_add_u32 s58, s{sP2R}, {extra}'); a('s_add_u32 s59, s58, 4096')
        a.label(lp)
        spin_dec()
        for x in range(8):
            a(f'buffer_load_dwordx4 {vr(vB+4*x,4)}, v{vL16}, {WS}, s{58 + x//4} offen offset:{(x % 4)*1024} sc1')
        a('s_waitcnt vmcnt(6)')
        for r in range(4): a(f'v_add_f32 v{Sm+r}, v{vB+r}, v{vB+4+r}')
        for x in range(2, 8):
            a(f's_waitcnt vmcnt({7-x})')
            for r in range(4): a(f'v_add_f32 v{Sm+r}, v{Sm+r}, v{vB+4*x+r}')
        a(f'v_cmp_u_f32 vcc, v{Sm}, v{Sm+1}')
        a(f'v_cmp_u_f32 s[60:61], v{Sm+2}, v{Sm+3}')
        a('s_or_b64 vcc, vcc, s[60:61]')
        a(f's_cbranch_vccz {ok}')
        a(f'v_max_u32 v{vTc}, v{vB}, v{vB+1}')
        for k in range(1, 16): a(f'v_max3_u32 v{vTc}, v{vTc}, v{vB+2*k}, v{vB+2*k+1}')
        a(f'v_cmp_eq_u32 vcc, -1, v{vTc}')
        a(f's_cbranch_vccnz {lp}')
        a.label(ok)
        return Sm

    def add_resid(Sm):
        a(f'v_cvt_pk_bf16_f32 v{vTc}, v{Sm}, v{Sm+1}'); a(f'v_cvt_pk_bf16_f32 v{vTd}, v{Sm+2}, v{Sm+3}')
        a(f'v_lshlrev_b32 v{Sm}, 16, v{vTc}'); a(f'v_and_b32 v{Sm+1}, s{sHI}, v{vTc}')
        a(f'v_lshlrev_b32 v{Sm+2}, 16, v{vTd}'); a(f'v_and_b32 v{Sm+3}, s{sHI}, v{vTd}')
        for r in range(4): a(f'v_add_f32 v{vX+r}, v{vX+r}, v{Sm+r}')
        a(f'v_cvt_pk_bf16_f32 v{vR}, v{vX}, v{vX+1}'); a(f'v_cvt_pk_bf16_f32 v{vR+1}, v{vX+2}, v{vX+3}')
        unpack_x()
    def unpack_x():
        a(f'v_lshlrev_b32 v{vX}, 16, v{vR}'); a(f'v_and_b32 v{vX+1}, s{sHI}, v{vR}')
        a(f'v_lshlrev_b32 v{vX+2}, 16, v{vR+1}'); a(f'v_and_b32 v{vX+3}, s{sHI}, v{vR+1}')

    def layernorm(st, dst):
        s1, s2, u = vB, vB+1, vB+2
        a(f'v_add_f32 v{s1}, v{vX}, v{vX+1}'); a(f'v_mul_f32 v{s2}, v{vX}, v{vX}')
        a(f'v_add_f32 v{u}, v{vX+2}, v{vX+3}'); a(f'v_fmac_f32 v{s2}, v{vX+1}, v{vX+1}')
        a(f'v_add_f32 v{s1}, v{s1}, v{u}'); a(f'v_fmac_f32 v{s2}, v{vX+2}, v{vX+2}')
        a(f'v_fmac_f32 v{s2}, v{vX+3}, v{vX+3}')
        row16_sum2(s1, s2)
        a(f'v_add_f32_dpp v{s1}, v{s1}, v{s1} row_bcast:15 row_mask:0xa bank_mask:0xf')
        a(f'v_add_f32_dpp v{s2}, v{s2}, v{s2} row_bcast:15 row_mask:0xa bank_mask:0xf')
        exec_set('0x10000', '0x10000')
        a(f'ds_write_b64 v{vSTW}, {vr(s1,2)} offset:{STATS + st*64}')
        exec_all()
        a('s_waitcnt lgkmcnt(0)')
        a('s_barrier')
        a(f'ds_read_b128 {vr(vB+4,4)}, v{vSTR} offset:{STATS + st*64}')
        a(f'ds_read_b128 {vr(vB+8,4)}, v{vSTR} offset:{STATS + st*64 + 16}')
        a('s_waitcnt lgkmcnt(1)')
        a(f'v_add_f32 v{s1}, v{vB+4}, v{vB+6}'); a(f'v_add_f32 v{s2}, v{vB+5}, v{vB+7}')
        a('s_waitcnt lgkmcnt(0)')
        a(f'v_add_f32 v{vB+8}, v{vB+8}, v{vB+10}'); a(f'v_add_f32 v{vB+9}, v{vB+9}, v{vB+11}')
        a(f'v_add_f32 v{s1}, v{s1}, v{vB+8}'); a(f'v_add_f32 v{s2}, v{s2}, v{vB+9}')
        tail = ln_finish(s1, s2, u)
        normalize([vX+r for r in range(4)], [vB+4+r for r in range(4)], [vB+8, vB+9], s1, s2, tail)
        a(f'ds_write_b64 v{vXW}, {vr(vB+8,2)} offset:{dst}')
        a('s_waitcnt lgkmcnt(0)')
        a('s_barrier')

    a.label('Lstep')
    a.fence()
    if env['ptouch']:
        sk = L('cpt')
        a(f's_cmp_eq_u32 s{sLOCAL}, 0'); a(f's_cbranch_scc1 {sk}')
        a(f'v_mov_b32 v{vB}, -1'); a(f'v_mov_b32 v{vB+1}, -1')
        a(f's_cmp_eq_u32 s{sS}, 8'); a(f's_cselect_b32 exec_lo, 0, s{sM1}'); a('s_mov_b32 exec_hi, exec_lo')
        for t in range(2):
            a(f'buffer_store_dwordx2 {vr(vB,2)}, v{vQS}, {WS}, s{sQW} offen offset:{t*32}')
        a(f's_cmp_eq_u32 s{sW}, 3'); a(f's_cselect_b32 exec_lo, 0, s{sM2}'); a('s_mov_b32 exec_hi, exec_lo')
        a(f'buffer_store_dwordx2 {vr(vB,2)}, v{vHS}, {WS}, s{sHW} offen')
        exec_all()
        a('s_nop 1')
        a.label(sk)
    nb = L('nob')
    a(f's_cmp_lt_u32 s{sS}, 2'); a(f's_cbranch_scc1 {nb}')
    combine(sJB, 1)
    a.label(nb)
    nf = L('nofin')
    a(f's_cmp_lg_u32 s{sS}, 8'); a(f's_cbranch_scc1 {nf}')
    a(f's_add_u32 s{sJA}, s{sJA}, {7*131072}')
    exec_set('-1', '0')
    a(f'v_add_u32 v{vXR}, {9*1024}, v{vXR}')
    exec_all()
    a.label(nf)
    a(f'ds_read_b64 {vr(vR,2)}, v{vXR} offset:{XR}')
    a('s_waitcnt lgkmcnt(0)')
    unpack_x()
    stamp((sS, 16, 16), vt=vTc)
    combine(sJA, 0)
    stamp((sS, 16, 17), vt=vTc)
    a('s_waitcnt lgkmcnt(0)')
    a('s_barrier')
    gemv(OB, [(vD, lambda c: wo(0, c)), (vD+4, lambda c: wo(1, c))])
    part_store(0)
    stamp((sS, 16, 18), vt=vTc)
    Sm = hop(0)
    stamp((sS, 16, 19), vt=vTc)
    add_resid(Sm)
    layernorm(0, XB1)
    stamp((sS, 16, 20), vt=vTc)
    nf1 = L('nof1')
    a(f's_cmp_eq_u32 s{sW}, 3'); a(f's_cbranch_scc1 {nf1}')
    gemv(XB1, [(vD, wg), (vD+4, wu)])
    for r in range(4): a(f'v_mul_f32 v{vD+r}, {f32(-G.LOG2E)}, v{vD+r}')
    for r in range(4): a(f'v_exp_f32 v{vD+r}, v{vD+r}')
    for r in range(4): a(f'v_add_f32 v{vD+r}, 1.0, v{vD+r}')
    for r in range(4): a(f'v_rcp_f32 v{vD+r}, v{vD+r}')
    for r in range(4): a(f'v_mul_f32 v{vD+r}, v{vD+r}, v{vD+4+r}')
    a(f'v_cvt_pk_bf16_f32 v{vD}, v{vD}, v{vD+1}'); a(f'v_cvt_pk_bf16_f32 v{vD+1}, v{vD+2}, v{vD+3}')
    a(f'v_min_u32 v{vD}, -2, v{vD}'); a(f'v_min_u32 v{vD+1}, -2, v{vD+1}')
    a(f's_mov_b64 exec, s[{sM2}:{sM2+1}]')
    local_or_sc1(lambda fl: a(f'buffer_store_dwordx2 {vr(vD,2)}, v{vHS}, {WS}, s{sHW} offen {fl}'))
    exec_all()
    a.label(nf1)
    stamp((sS, 16, 21), vt=vTc)
    lp = L('hh')
    a.label(lp)
    spin_dec()
    def hl(fl):
        for c in range(6):
            a(f'buffer_load_dwordx4 {vr(vB+4*c,4)}, v{vH}, {WS}, s{sHW} offen offset:{c*64} {fl}')
    local_or(hl, lpoll, 'sc1')
    for c in range(6):
        a(f's_waitcnt vmcnt({5-c})')
        for t in range(2):
            a(f'v_mfma_f32_16x16x32_bf16 {vr(vD+4*t,4)}, {wd(t,c)}, {vr(vB+4*c,4)}, {"0" if c == 0 else vr(vD+4*t,4)}')
            if c == 0 and t == 0: a(f'v_max_u32 v{vTc}, v{vB}, v{vB+1}')
            else: a(f'v_max3_u32 v{vTc}, v{vTc}, v{vB+4*c+2*t}, v{vB+4*c+2*t+1}')
    a(f'v_cmp_eq_u32 vcc, -1, v{vTc}')
    a('s_nop 4')
    a(f's_cbranch_vccnz {lp}')
    part_store(G.P3B - G.P2B)
    stamp((sS, 16, 22), vt=vTc)
    go = L('go3')
    a(f's_cmp_lg_u32 s{sS}, 8'); a(f's_cbranch_scc1 {go}')
    a(f's_cmp_lg_u32 s{sDES}, 0'); a('s_cbranch_scc1 Lend')
    a.label(go)
    a('s_barrier')
    Sm = hop(G.P3B - G.P2B)
    stamp((sS, 16, 23), vt=vTc)
    add_resid(Sm)
    no = L('noout')
    a(f's_cmp_lg_u32 s{sDES}, 0'); a(f's_cbranch_scc1 {no}')
    a(f's_cmp_lt_u32 s{sS}, 2'); a(f's_cbranch_scc1 {no}')
    a(f'v_and_b32 v{vTc}, 1023, v{vXR}')
    a(f'v_lshrrev_b32 v{vTd}, 5, v0'); a(f'v_xor_b32 v{vTd}, 1, v{vTd}')
    a(f'v_lshl_add_u32 v{vTc}, v{vTd}, 10, v{vTc}')
    a(f'v_add_u32 v{vTc}, s{sOUTO}, v{vTc}')
    a(f's_cmp_eq_u32 s{sS}, 8'); a('s_cselect_b32 exec_lo, -1, 0')
    a(f'buffer_store_dwordx2 {vr(vR,2)}, v{vTc}, s[{S_OUT}:{S_OUT+3}], 0 offen')
    exec_all()
    stamp((sS, 16, 26), vt=vTc)
    a(f's_cmp_eq_u32 s{sS}, 8')
    a('s_cbranch_scc1 Lend')
    a.label(no)
    exec_set('-1', '0')
    a(f'ds_write_b64 v{vXR}, {vr(vR,2)} offset:{XR + 10240}')
    exec_all()
    layernorm(1, XB2)
    stamp((sS, 16, 24), vt=vTc)
    gemv(XB2, [(vD, lambda c: wq(0, c)), (vD+4, lambda c: wq(1, c))])
    q_store('0x00010001', True)
    stamp((sS, 16, 25), vt=vTc)
    a(f's_add_u32 s{sS}, s{sS}, 1')
    a(f's_add_u32 s{sJA}, s{sJA}, 131072'); a(f's_add_u32 s{sJB}, s{sJB}, 131072')
    a(f's_add_u32 s{sP2W}, s{sP2W}, 32768'); a(f's_add_u32 s{sP2R}, s{sP2R}, 32768')
    a(f's_add_u32 s{sHW}, s{sHW}, 8192'); a(f's_add_u32 s{sQW}, s{sQW}, 8192')
    a(f's_add_u32 s{sOUTO}, s{sOUTO}, 1024')
    a(f'v_add_u32 v{vXR}, 1024, v{vXR}')
    a('s_branch Lstep')
```

```python
import sys, struct
sys.path.insert(0, 'gen')
from asmlib import Asm, vr

NAME = 'interleave_layers__gqa_block_cached__glu_gated_glu__decode'
def f32(x): return '0x%08x' % struct.unpack('<I', struct.pack('<f', x))[0]
LOG2E = 1.4426950408889634
SCALE = 128 ** -0.5

PART = 0x000000
P2B = 0x200000
P3B = 0x250000
HB = 0x2A0000
QB = 0x2C0000
STAMP = 0x300000
WS_BYTES = 0x400000
LDS_BYTES = 163840
SPIN = 400000

DPPF = 'row_mask:0xf bank_mask:0xf'

class VM:
    def __init__(self, a): self.a = a; self.q = []
    def reset(self, tags): self.q = list(tags)
    def issue(self, tag): self.q.append(tag)
    def wait(self, tag):
        if tag not in self.q: return
        i = len(self.q) - 1 - self.q[::-1].index(tag)
        n = len(self.q) - 1 - i
        assert n <= 63
        self.a(f's_waitcnt vmcnt({n})')
        self.q = self.q[i+1:]
    def drain(self):
        self.a('s_waitcnt vmcnt(0)'); self.q = []

def gen(D=8, stamps=False, force_nonlocal=False, spin=SPIN, lpoll='sc1', wpf=True, ptouch=True, NF=46, NQ=54, NPB=6):
    assert D <= 8
    a = Asm()
    uid = [0]
    def L(p):
        uid[0] += 1
        return f'L{p}_{uid[0]}'

    hdr = open(f'cdna_kernels/{NAME}.s.ref').read().split('\n')
    for ln in hdr:
        if ln.startswith('; @launch'): break
        a.raw(ln)
    a.raw(f'; @launch grid=(256,1,1) block=(256,1,1) lds={LDS_BYTES}')
    a.raw('.amdgcn_target "amdgcn-amd-amdhsa--gfx950"')
    a.raw('.text')
    a.raw(f'.globl {NAME}_kernel')
    a.raw('.p2align 8')
    a.raw(f'.type {NAME}_kernel,@function')
    a.raw(f'{NAME}_kernel:')

    S_WS = 20
    S_DBG = 24
    sX, sT, sW, sVAL, sLOCAL, sSPIN = 90, 91, 92, 93, 32, 33
    sSCALE, sHI = 94, 95
    sSTO = 96

    def srd(b, lo, hi, nrec):
        a(f's_mov_b32 s{b}, s{lo}'); a(f's_mov_b32 s{b+1}, s{hi}')
        a(f's_mov_b32 s{b+2}, {nrec}'); a(f's_mov_b32 s{b+3}, 0x20000')

    def stamp(k, vt=0, vt2=None):
        if not stamps: return
        a('s_memrealtime s[98:99]')
        if isinstance(k, int):
            a(f's_add_u32 s97, s{sSTO}, {k*4}')
        else:
            sg, mul, add = k
            a(f's_mul_i32 s97, s{sg}, {mul*4}')
            a(f's_add_u32 s97, s97, s{sSTO}')
            a(f's_add_u32 s97, s97, {add*4}')
        a('s_mov_b64 s[100:101], exec')
        a('s_mov_b64 exec, 1')
        a('s_mov_b32 m0, s97')
        a('s_waitcnt lgkmcnt(0)')
        a(f'v_mov_b32 v{vt}, s98')
        a(f'ds_write_addtid_b32 v{vt}')
        a('s_mov_b64 exec, s[100:101]')

    def spin_dec():
        a(f's_sub_u32 s{sSPIN}, s{sSPIN}, 1')
        a('s_cbranch_scc1 Lend')

    a('s_cmp_ge_u32 s2, 256')
    a('s_cbranch_scc1 Lend2')
    a('s_load_dwordx4 s[64:67], s[0:1], 8')
    a('s_load_dwordx4 s[68:71], s[0:1], 80')
    a('v_lshrrev_b32 v1, 6, v0')
    a('v_and_b32 v0, 63, v0')
    a(f's_and_b32 s{sX}, s2, 7')
    a(f's_lshr_b32 s{sT}, s2, 3')
    a(f'v_readfirstlane_b32 s{sW}, v1')
    a(f's_mov_b32 s{sSPIN}, {spin}')
    a(f's_mov_b32 s{sSCALE}, {f32(SCALE)}')
    a(f's_mov_b32 s{sHI}, 0xffff0000')
    a('s_getreg_b32 s3, hwreg(HW_REG_XCC_ID, 0, 4)')
    a('s_and_b32 s3, s3, 7')
    a(f's_mul_i32 s{sVAL}, s3, s3')
    a(f's_lshl_b32 s{sVAL}, s{sVAL}, 14')
    a('s_lshl_b32 s3, s3, 6')
    a(f's_add_u32 s{sVAL}, s{sVAL}, s3')
    a(f's_add_u32 s{sVAL}, s{sVAL}, 1')
    if stamps:
        a(f's_cmp_lt_u32 s{sT}, 4'); a('s_mov_b32 s97, 9216'); a('s_cselect_b32 s97, 28672, s97'); a(f's_lshl_b32 s{sSTO}, s{sW}, 10'); a(f's_add_u32 s{sSTO}, s{sSTO}, s97')
        a('v_lshlrev_b32 v1, 4, v0'); a(f'v_add_u32 v1, s{sSTO}, v1')
        for r in range(4): a(f'v_mov_b32 v{4+r}, 0')
        a('ds_write_b128 v1, v[4:7]')
        a('s_memrealtime s[98:99]'); a('s_waitcnt lgkmcnt(0)'); a(f's_add_u32 m0, s{sSTO}, 16'); a('v_mov_b32 v4, s98')
        a('s_mov_b64 exec, 1'); a('ds_write_addtid_b32 v4'); a('s_mov_b64 exec, -1')
    a(f's_cmp_lt_u32 s{sT}, 4')
    a('s_cbranch_scc1 Lchain')

    S_K, S_V, S_KL, S_VL = 4, 8, 12, 16
    sBASE, sOFF, sB, sP2D = 28, 29, 30, 31
    sQ2, sQ1, sPUB1, sPUB2, sLDS = 34, 35, 36, 37, 38
    sMT = 40
    sTAIL = 48
    sRET = 50
    sALT = 52
    sW512, sW8, sML = 53, 54, 55
    vT0, vKOFF, vVOFF, vQOFF, vLDS, vT1 = 0, 1, 2, 3, 4, 5
    vP1 = 6; vBQ = 16; vMASK = 32; vQ = 36; vQA = 40; vD1 = 52; vB1 = 60
    RING = 9216 + (4096 if stamps else 0)
    TAU = (0, 2, 1, 3)

    def kslot(R, k):
        if k < 8: return vr(64 + 96*R + 4*k, 4)
        if k < 20: return vr(128*R + 4*(k-8), 4, 'a')
        if k < 36: return vr(64 + 96*R + 4*(k-12), 4)
        return vr(128*R + 48, 4, 'a')
    def vslot(R, k):
        idx = 13 + (18 if k == 36 else (k-1)//2)
        return vr(128*R + 4*idx, 4, 'a')
    def v_in_lds(k): return k % 2 == 0 and k < 36
    def lds_off(R, k): return (R*18 + k//2) * 1024

    vm = VM(a)
    soff_known = [None]
    def load(n, R, tagb):
        isk = n < 37
        k = n if isk else n - 37
        grp = k // 4
        if soff_known[0] != grp:
            a(f's_add_u32 s{sOFF}, s{sBASE}, {grp*4096}')
            soff_known[0] = grp
        io = (k % 4) * 1024
        sr = (S_KL if k == 36 else S_K) if isk else (S_VL if k == 36 else S_V)
        vo = vKOFF if isk else vVOFF
        if (not isk) and v_in_lds(k):
            a(f's_add_u32 m0, s{sLDS}, {lds_off(R, k) - io + RING}')
            a(f'buffer_load_dwordx4 v{vo}, s[{sr}:{sr+3}], s{sOFF} offen offset:{io} nt lds')
        else:
            dst = kslot(R, k) if isk else vslot(R, k)
            a(f'buffer_load_dwordx4 {dst}, v{vo}, s[{sr}:{sr+3}], s{sOFF} offen offset:{io} nt')
        vm.issue((tagb, n))

    def local_or(fn, fl_local, fl_far):
        if fl_local == fl_far:
            fn(fl_far); return
        nl, dn = L('nl'), L('dn')
        a(f's_cmp_eq_u32 s{sLOCAL}, 0'); a(f's_cbranch_scc1 {nl}')
        fn(fl_local); a(f's_branch {dn}')
        a.label(nl); fn(fl_far); a.label(dn)

    def qload(sreg, tag, dual=False):
        fn = lambda fl: a(f'buffer_load_dwordx4 {vr(vQ,4)}, v{vQOFF}, s[{S_WS}:{S_WS+3}], s{sreg} offen {fl}')
        if dual: local_or(fn, lpoll, 'sc1')
        else: fn('sc1')
        if tag: vm.issue(tag)

    def qcheck():
        a(f'v_max3_u32 v{vT0}, v{vQ}, v{vQ+1}, v{vQ+2}')
        a(f'v_max_u32 v{vT0}, v{vT0}, v{vQ+3}')
        a(f'v_cmp_eq_u32 vcc, -1, v{vT0}')

    def qwait_blocking(sreg, first_loaded):
        lp, ok, chk = L('qw'), L('qok'), L('qchk')
        if first_loaded:
            a(f's_branch {chk}')
        a.label(lp)
        spin_dec()
        qload(sreg, None, dual=(sreg == sQ2))
        a('s_waitcnt vmcnt(0)')
        a.label(chk)
        qcheck()
        a(f's_cbranch_vccnz {lp}')

    def build_bq():
        for t in range(4):
            for r in range(4):
                a(f'v_cndmask_b32 v{vBQ+4*t+r}, 0, v{vQ+r}, s[{sMT+2*t}:{sMT+2*t+1}]')

    def qk_mfma(R, k, Q):
        t = TAU[k % 4]
        c = '0' if k % 4 == 0 else vr(Q, 4)
        return f'v_mfma_f32_16x16x32_bf16 {vr(Q,4)}, {kslot(R,k)}, {vr(vBQ+4*t,4)}, {c}'

    def diag_ops(S, Q):
        return [f'v_mov_b32_dpp v{S}, v{Q} quad_perm:[0,0,0,0] {DPPF}',
                f'v_add_f32_dpp v{S}, v{Q+1}, v{S} quad_perm:[1,1,1,1] {DPPF}',
                f'v_add_f32_dpp v{S}, v{Q+2}, v{S} quad_perm:[2,2,2,2] {DPPF}',
                f'v_add_f32_dpp v{S}, v{Q+3}, v{S} quad_perm:[3,3,3,3] {DPPF}']
    def kill_ops(S):
        return [f's_mov_b64 exec, s[{sTAIL}:{sTAIL+1}]', f'v_mov_b32 v{S}, 0xff800000', 's_mov_b64 exec, -1']
    def round_ops(Sa, Sb, u):
        return [f'v_cvt_pk_bf16_f32 v{u}, v{Sa}, v{Sb}', f'v_lshlrev_b32 v{Sa}, 16, v{u}', f'v_and_b32 v{Sb}, s{sHI}, v{u}',
                f'v_mul_f32 v{Sa}, s{sSCALE}, v{Sa}', f'v_mul_f32 v{Sb}, s{sSCALE}, v{Sb}',
                f'v_cvt_pk_bf16_f32 v{u}, v{Sa}, v{Sb}', f'v_lshlrev_b32 v{Sa}, 16, v{u}', f'v_and_b32 v{Sb}, s{sHI}, v{u}']

    def kphase_fast(R, order, S, u, hook=None):
        dq = []; rq = []
        done = []
        n = len(order)
        for idx in range(n + 2):
            if idx >= 2:
                c2 = order[idx-2]
                dq = diag_ops(S + c2, vQA + 4*((idx-2) % 3))
            ms = []
            if idx < n:
                c = order[idx]
                ms = [qk_mfma(R, 4*c + k, vQA + 4*(idx % 3)) for k in range(4 if c < 9 else 1)]
            for k in range(4):
                if k < len(ms): a(ms[k])
                if dq: a(dq.pop(0))
                if rq: a(rq.pop(0))
            if idx >= 2:
                c2 = order[idx-2]
                if c2 == 9:
                    for o in kill_ops(S + 9): a(o)
                done.append(c2)
                if len(done) == 2:
                    rq += round_ops(S + done[0], S + done[1], u); done = []
            if hook: hook(idx)
        for o in rq: a(o)

    def wave_reduce(op, v):
        a(f'{op}_dpp v{v}, v{v}, v{v} row_ror:4 {DPPF}')
        a(f'{op}_dpp v{v}, v{v}, v{v} row_ror:8 {DPPF}')
        a(f'{op}_dpp v{v}, v{v}, v{v} row_bcast:15 row_mask:0xa bank_mask:0xf')
        a(f'{op}_dpp v{v}, v{v}, v{v} row_bcast:31 row_mask:0xc bank_mask:0xf')

    def max_phase(S, nmc, t2):
        a(f'v_max3_f32 v{nmc}, v{S}, v{S+1}, v{S+2}')
        a(f'v_max3_f32 v{t2}, v{S+3}, v{S+4}, v{S+5}')
        a(f'v_max3_f32 v{nmc}, v{nmc}, v{S+6}, v{S+7}')
        a(f'v_max3_f32 v{t2}, v{t2}, v{S+8}, v{S+9}')
        a(f'v_max_f32 v{nmc}, v{nmc}, v{t2}')
        wave_reduce('v_max_f32', nmc)
        a(f'v_mul_f32 v{nmc}, {f32(-LOG2E)}, v{nmc}')
        a(f'v_readlane_b32 s56, v{nmc}, 63')
        a(f'v_mov_b32 v{nmc}, s56')

    def exp_ops(S, nmc, l, first):
        return [f'v_fmamk_f32 v{S}, v{S}, {f32(LOG2E)}, v{nmc}', f'v_exp_f32 v{S}, v{S}',
                (f'v_mov_b32 v{l}, v{S}' if first else f'v_add_f32 v{l}, v{l}, v{S}'),
                f'v_cvt_pk_bf16_f32 v{S}, v{S}, v{S}']

    def ml_write(nmc, si):
        wave_reduce('v_add_f32', nmc + 1)
        a(f'v_mov_b32 v{vT0}, s{sW8}')
        a('s_mov_b32 exec_lo, 0'); a('s_mov_b32 exec_hi, 0x80000000')
        a(f'ds_write_b64 v{vT0}, {vr(nmc,2)} offset:{8192 + si*32}')
        a('s_mov_b64 exec, -1')

    def and_ops(B, p, pair):
        ops = []
        for r in range(4):
            mirrored = (r >= 2) if pair == 0 else (r < 2)
            if mirrored: ops.append(f'v_and_b32_dpp v{B+r}, v{p}, v{vMASK+r} row_half_mirror {DPPF}')
            else: ops.append(f'v_and_b32 v{B+r}, v{p}, v{vMASK+r}')
        return ops

    def pv_mfma(src, B, Dacc, first):
        return f'v_mfma_f32_16x16x32_bf16 {vr(Dacc,4)}, {src}, {vr(B,4)}, {"0" if first else vr(Dacc,4)}'

    def publish(D0, si, sPUB):
        D1 = D0 + 4
        X = vQA
        a(f'v_lshrrev_b32 v{vT0}, 1, v{vVOFF}')
        a(f'v_add_u32 v{vT1}, s{sW512}, v{vT0}')
        a(f'v_mov_b32 v{X+2}, 1')
        a(f'v_mov_b32 v{X+3}, 0')
        a(f'v_add_f32_dpp v{X}, v{D1}, v{D0} row_ror:8 row_mask:0xf bank_mask:0x3')
        a(f'v_add_f32_dpp v{X+1}, v{D1+1}, v{D0+1} row_ror:8 row_mask:0xf bank_mask:0x3')
        a(f'v_add_f32_dpp v{X}, v{D0+2}, v{D1+2} row_ror:8 row_mask:0xf bank_mask:0xc')
        a(f'v_add_f32_dpp v{X+1}, v{D0+3}, v{D1+3} row_ror:8 row_mask:0xf bank_mask:0xc')
        a(f'ds_write_b64 v{vT1}, {vr(X,2)} offset:{si*2048}')
        a('s_mov_b64 exec, 1')
        a(f'ds_add_rtn_u32 v{X+2}, v{X+3}, v{X+2} offset:{8320 + si*4}')
        a('s_mov_b64 exec, -1')
        a('s_waitcnt lgkmcnt(0)')
        a(f'v_readfirstlane_b32 s56, v{X+2}')
        done = L('pubdone')
        a('s_and_b32 s56, s56, 3')
        a('s_cmp_lg_u32 s56, 3')
        a(f's_cbranch_scc1 {done}')
        T = vBQ
        a(f'ds_read_b128 {vr(T,4)}, v{X+3} offset:{8192 + si*32}')
        a(f'ds_read_b128 {vr(T+4,4)}, v{X+3} offset:{8192 + si*32 + 16}')
        for w in range(4):
            a(f'ds_read_b64 {vr(T+8+2*w,2)}, v{vT0} offset:{si*2048 + w*512}')
        a('s_waitcnt lgkmcnt(4)')
        M = X + 4
        a(f'v_min3_f32 v{M}, v{T}, v{T+2}, v{T+4}')
        a(f'v_min_f32 v{M}, v{M}, v{T+6}')
        for w in range(4): a(f'v_sub_f32 v{T+2*w}, v{M}, v{T+2*w}')
        for w in range(4): a(f'v_exp_f32 v{T+2*w}, v{T+2*w}')
        a('s_waitcnt lgkmcnt(0)')
        a(f'v_mul_f32 v{X}, v{T}, v{T+8}')
        a(f'v_mul_f32 v{X+1}, v{T}, v{T+9}')
        for w in range(1, 4):
            a(f'v_fmac_f32 v{X}, v{T+2*w}, v{T+8+2*w}')
            a(f'v_fmac_f32 v{X+1}, v{T+2*w}, v{T+9+2*w}')
        a(f'v_mul_f32 v{M+1}, v{T}, v{T+1}')
        for w in range(1, 4):
            a(f'v_fmac_f32 v{M+1}, v{T+2*w}, v{T+1+2*w}')
        a(f's_add_u32 s56, s{sPUB}, s{sML}')
        nl = L('pubnl')
        a(f's_cmp_eq_u32 s{sLOCAL}, 0')
        a(f's_cbranch_scc1 {nl}')
        a(f'buffer_store_dwordx2 {vr(X,2)}, v{vT0}, s[{S_WS}:{S_WS+3}], s{sPUB} offen')
        a('s_mov_b64 exec, 1')
        a(f'buffer_store_dwordx2 {vr(M,2)}, off, s[{S_WS}:{S_WS+3}], s56')
        a('s_mov_b64 exec, -1')
        a(f's_branch {done}')
        a.label(nl)
        a(f'buffer_store_dwordx2 {vr(X,2)}, v{vT0}, s[{S_WS}:{S_WS+3}], s{sPUB} offen sc1')
        a('s_mov_b64 exec, 1')
        a(f'buffer_store_dwordx2 {vr(M,2)}, off, s[{S_WS}:{S_WS+3}], s56 sc1')
        a('s_mov_b64 exec, -1')
        a.label(done)

    def pretouch(sPUB):
        if not ptouch: return
        sk = L('pt')
        a(f's_cmp_eq_u32 s{sLOCAL}, 0'); a(f's_cbranch_scc1 {sk}')
        a(f's_cmp_lg_u32 s{sW}, 0'); a(f's_cbranch_scc1 {sk}')
        a(f'v_mov_b32 v{vQA+8}, -1'); a(f'v_mov_b32 v{vQA+9}, -1')
        a(f'v_lshrrev_b32 v{vT0}, 1, v{vVOFF}')
        a(f's_add_u32 s56, s{sPUB}, s{sML}')
        a(f'buffer_store_dwordx2 {vr(vQA+8,2)}, v{vT0}, s[{S_WS}:{S_WS+3}], s{sPUB} offen')
        a('s_mov_b64 exec, 1')
        a(f'buffer_store_dwordx2 {vr(vQA+8,2)}, off, s[{S_WS}:{S_WS+3}], s56')
        a('s_mov_b64 exec, -1')
        a.label(sk)

    def compute1(R, ci):
        if ci < 37:
            k = ci; c = k // 4
            a(qk_mfma(R, k, vQA))
            if k % 4 == 3 or k == 36:
                for o in diag_ops(vP1 + c, vQA): a(o)
                if c == 9:
                    for o in kill_ops(vP1 + 9): a(o)
                if c % 2 == 1:
                    for o in round_ops(vP1 + c - 1, vP1 + c, vT0): a(o)
            if k == 36:
                softmax1(R)
        else:
            k = ci - 37; c = k // 4
            if k % 2 == 0:
                if v_in_lds(k):
                    a(f'ds_read_b128 {vr(vBQ,4)}, v{vLDS} offset:{lds_off(R,k)}')
                for o in and_ops(vB1, vP1 + c, (k % 4) // 2): a(o)
                if v_in_lds(k):
                    a('s_waitcnt lgkmcnt(0)')
                    a(pv_mfma(vr(vBQ,4), vB1, vD1, k == 0))
                else:
                    a(pv_mfma(vslot(R,k), vB1, vD1, False))
            else:
                a(pv_mfma(vslot(R,k), vB1, vD1 + 4, k == 1))

    def softmax1(R):
        nmc = vQA + 4
        max_phase(vP1, nmc, vQA + 6)
        ops = [exp_ops(vP1 + c, nmc, nmc + 1, c == 0) for c in range(10)]
        for st in range(4):
            for c in range(10): a(ops[c][st])
        ml_write(nmc, R)

    a(f's_sub_u32 s57, s{sT}, 4')
    a('s_mul_i32 s58, s57, 37')
    a('s_lshr_b32 s58, s58, 8')
    a('s_mul_i32 s59, s58, 7')
    a('s_sub_u32 s59, s57, s59')
    a(f's_lshl_b32 s60, s{sX}, 2')
    a('s_add_u32 s60, s60, s58')
    a('s_lshl_b32 s61, s59, 2')
    a(f's_add_u32 s61, s61, s{sW}')
    a('s_mul_i32 s62, s61, 9363')
    a('s_add_u32 s63, s62, 9363')
    a('s_lshr_b32 s62, s62, 8')
    a('s_lshr_b32 s63, s63, 8')
    a('s_sub_u32 s63, s63, s62')
    a(f's_lshl_b32 s{sBASE}, s60, 20')
    a('s_lshl_b32 s62, s62, 10')
    a(f's_add_u32 s{sBASE}, s{sBASE}, s62')
    a(f'v_lshlrev_b32 v{vVOFF}, 4, v0')
    a(f'v_and_b32 v{vQOFF}, 3, v0')
    a(f'v_lshlrev_b32 v{vQOFF}, 4, v{vQOFF}')
    a(f'v_lshrrev_b32 v{vT1}, 4, v0')
    a(f'v_lshl_add_u32 v{vQOFF}, v{vT1}, 6, v{vQOFF}')
    a(f'v_bfe_u32 v{vT1}, v0, 2, 2')
    a(f'v_lshl_add_u32 v{vKOFF}, v{vT1}, 8, v{vQOFF}')
    a(f's_mul_i32 s{sLDS}, s{sW}, 36864')
    vm.reset([])
    if wpf:
        a('s_load_dwordx2 s[76:77], s[0:1], 24')
        a('s_load_dwordx4 s[80:83], s[0:1], 48')
        a('s_lshl_b32 s72, s57, 2'); a(f's_add_u32 s72, s72, s{sW}')
        a('s_mul_i32 s73, s72, 37'); a(f'v_add_u32 v{vBQ}, s73, v0')
        a(f'v_lshrrev_b32 v{vBQ+3}, 3, v{vBQ}'); a(f'v_lshlrev_b32 v{vBQ+3}, 13, v{vBQ+3}')
        a(f'v_and_b32 v{vBQ+4}, 7, v{vBQ}'); a(f'v_lshl_add_u32 v{vBQ+3}, v{vBQ+4}, 7, v{vBQ+3}')
        a(f's_lshl_b32 s73, s{sX}, 10'); a(f'v_add_u32 v{vBQ+3}, s73, v{vBQ+3}')
    a('s_waitcnt lgkmcnt(0)')
    if wpf:
        srd(S_V, 76, 77, '0x400000')
        a('s_mov_b32 exec_hi, 31')
        a(f'buffer_load_dword v{vBQ+8}, v{vBQ+3}, s[{S_V}:{S_V+3}], 0 offen'); vm.issue('pf')
        a('s_mov_b64 exec, -1')
    srd(S_K, 64, 65, '0x10000000')
    soff_known[0] = None
    for n in range(D): load(n, 0, 0)
    srd(S_V, 66, 67, '0x10000000')
    a('s_cmp_eq_u32 s63, 37')
    a('s_cselect_b32 s57, 0x10000000, 0')
    srd(S_KL, 64, 65, 's57'); srd(S_VL, 66, 67, 's57')
    a(f's_cselect_b32 s{sTAIL}, 0xfff0fff0, -1')
    a(f's_mov_b32 s{sTAIL+1}, s{sTAIL}')
    srd(S_WS, 70, 71, hex(WS_BYTES)); srd(S_DBG, 68, 69, '256')
    stamp(0, vt=vT1)
    for t in range(4):
        a(f's_mov_b32 s{sMT+2*t}, {hex(0x000f000f << (4*t))}')
        a(f's_mov_b32 s{sMT+2*t+1}, {hex(0x000f000f << (4*t))}')
    a(f'v_add_u32 v{vLDS}, s{sLDS}, v{vVOFF}')
    a(f'v_add_u32 v{vLDS}, {RING}, v{vLDS}')
    a(f'v_and_b32 v{vT1}, 1, v0')
    a(f'v_lshlrev_b32 v{vT1}, 4, v{vT1}')
    a(f'v_mov_b32 v{vQA}, 0xffff')
    a(f'v_lshlrev_b32 v{vT1}, v{vT1}, v{vQA}')
    a(f'v_bfe_u32 v{vQA}, v0, 1, 2')
    for r in range(4):
        a(f'v_cmp_eq_u32 vcc, {r}, v{vQA}')
        a(f'v_cndmask_b32 v{vMASK+r}, 0, v{vT1}, vcc')
    a(f's_lshl_b32 s{sW512}, s{sW}, 9')
    a(f's_lshl_b32 s{sW8}, s{sW}, 3')
    a('s_lshl_b32 s57, s60, 12')
    a('s_lshl_b32 s58, s59, 9')
    a(f's_add_u32 s{sPUB1}, s57, s58')
    a(f's_add_u32 s{sPUB2}, s{sPUB1}, {8*131072}')
    a(f's_lshl_b32 s{sML}, s59, 3')
    a(f's_sub_u32 s{sML}, s{sML}, s58')
    a(f's_add_u32 s{sML}, s{sML}, 3584')
    a(f's_lshl_b32 s{sQ1}, s60, 8')
    a(f's_add_u32 s{sQ1}, s{sQ1}, {QB}')
    a(f's_add_u32 s{sQ2}, s{sQ1}, {8*8192}')
    a(f's_mov_b32 s{sB}, 0')
    a(f's_mov_b32 s{sLOCAL}, 0')
    a(f's_mov_b32 s{sALT}, 0')
    a(f's_mov_b32 s{sP2D}, 0')
    if wpf:
        a('s_mul_i32 s73, s72, 19'); a(f'v_add_u32 v{vBQ+1}, s73, v0')
        a(f'v_lshrrev_b32 v{vBQ+4}, 2, v{vBQ+1}'); a(f'v_mul_u32_u24 v{vBQ+4}, 2752, v{vBQ+4}')
        a(f'v_and_b32 v{vBQ+1}, 3, v{vBQ+1}'); a(f'v_lshlrev_b32 v{vBQ+1}, 7, v{vBQ+1}'); a(f'v_min_u32 v{vBQ+1}, 380, v{vBQ+1}')
        a(f's_mul_i32 s73, s{sX}, 384'); a(f'v_add3_u32 v{vBQ+1}, v{vBQ+1}, v{vBQ+4}, s73')
        srd(72, 80, 81, hex(512*2752)); srd(76, 82, 83, hex(512*2752))
    a(f'v_mov_b32 v{vQA}, -1'); a(f'v_mov_b32 v{vQA+1}, -1')
    a(f'v_lshrrev_b32 v{vT1}, 1, v{vVOFF}')
    a(f's_lshl_b32 s57, s{sW}, 19')
    a(f's_add_u32 s57, s57, s{sPUB1}')
    for j in range(4):
        a(f'buffer_store_dwordx2 {vr(vQA,2)}, v{vT1}, s[{S_WS}:{S_WS+3}], s57 offen sc1'); vm.issue('init')
        if j < 3: a('s_add_u32 s57, s57, 131072')
    a(f's_lshl_b32 s57, s{sW}, 19')
    a(f's_add_u32 s57, s57, s{sPUB1}')
    a(f's_add_u32 s57, s57, s{sML}')
    a(f'v_lshlrev_b32 v{vT1}, 17, v0')
    a('s_mov_b64 exec, 15')
    a(f'buffer_store_dwordx2 {vr(vQA,2)}, v{vT1}, s[{S_WS}:{S_WS+3}], s57 offen sc1'); vm.issue('init')
    a(f'v_lshlrev_b32 v{vT1}, 2, v0')
    a(f'v_mov_b32 v{vQA+2}, 0')
    a(f'ds_write_b32 v{vT1}, v{vQA+2} offset:8320')
    a('s_mov_b64 exec, -1')

    assert NQ + D >= 37 + D and NF >= 2*D + 2 and NQ >= NF + D
    def pro_step(n):
        if n == 74:
            a(f's_add_u32 s{sBASE}, s{sBASE}, 0x2000000'); soff_known[0] = None
            a(f's_add_u32 s{sQ1}, s{sQ1}, 8192')
            qload(sQ1, 'q1')
        vm.wait((0, n - D))
        if n < 74: load(n, 0, 0)
        else: load(n - 74, 1, 1)
    for n in range(D, NQ + D):
        if n == NF:
            a(f's_lshl_b32 s57, s{sX}, 5')
            a(f'buffer_load_dword v{vQ}, off, s[{S_DBG}:{S_DBG+3}], s57 sc1'); vm.issue('flag')
        if n == NF + D:
            vm.wait('flag')
            lp, chk = L('fl'), L('flc')
            a(f's_branch {chk}')
            a.label(lp)
            spin_dec()
            a('s_sleep 4')
            a(f'buffer_load_dword v{vQ}, off, s[{S_DBG}:{S_DBG+3}], s57 sc1')
            a('s_waitcnt vmcnt(0)')
            a.label(chk)
            a(f'v_readfirstlane_b32 s58, v{vQ}')
            a('s_and_b32 s59, s58, 63')
            a('s_cmp_lg_u32 s59, 32')
            a(f's_cbranch_scc1 {lp}')
            a(f's_lshl_b32 s59, s{sVAL}, 5')
            a('s_cmp_eq_u32 s58, s59')
            a(f's_cselect_b32 s{sLOCAL}, {0 if force_nonlocal else 1}, 0')
            stamp(1, vt=vT1)
            pretouch(sPUB1)
        if n == NQ:
            qload(sQ1, 'q1')
        pro_step(n)
        if wpf and n in (D + 4, D + 8):
            sr = 72 if n == D + 4 else 76
            a('s_mov_b64 exec, 0x7ffff')
            a(f'buffer_load_dword v{vBQ+8}, v{vBQ+1}, s[{sr}:{sr+3}], 0 offen'); vm.issue('pf')
            a('s_mov_b64 exec, -1')
        if n == 2*D + 1:
            assert 'init' not in vm.q
            a('s_waitcnt lgkmcnt(0)')
            a('s_barrier')
            sk = L('noat')
            a(f's_cmp_lg_u32 s{sW}, 0')
            a(f's_cbranch_scc1 {sk}')
            a(f's_lshl_b32 s57, s{sX}, 5')
            a(f'v_mov_b32 v{vT1}, s{sVAL}')
            a('s_mov_b64 exec, 1')
            a(f'buffer_atomic_add v{vT1}, off, s[{S_DBG}:{S_DBG+3}], s57 sc1')
            a('s_mov_b64 exec, -1')
            a.label(sk)
    vm.wait('q1')
    qwait_blocking(sQ1, True)
    stamp(2, vt=vT1)
    build_bq()
    nn = [NQ + D]
    def pro_hook(idx):
        if idx % 3 == 2:
            pro_step(nn[0]); nn[0] += 1
    kphase_fast(0, list(range(10)), vP1, vT0, pro_hook)
    softmax1(0)
    ci = 37
    for n in range(nn[0], 74 + D):
        pro_step(n)
        for _ in range(3):
            if ci <= n - D:
                compute1(0, ci); ci += 1
    assert ci == 74
    publish(vD1, 0, sPUB1)
    stamp((sB, 4, 8), vt=vT1)
    a(f's_add_u32 s{sPUB1}, s{sPUB1}, 131072')
    a(f's_mov_b32 s{sB}, 1')
    for n in range(D, D + NPB):
        vm.wait((1, n - D)); load(n, 1, 1)
    a('s_branch Lmainpost1')

    assert D + NPB <= 20
    class P2:
        def __init__(self, R):
            self.R = R
            base = 64 + 96*R
            self.S = base + 32; self.nmc = self.S + 10; self.u = self.S + 12; self.t2 = self.S + 13
            self.Dacc = base + 48; self.Bb = base + 56; self.TT = base + 64
        def rd(self, k):
            a(f'ds_read_b128 {vr(self.TT + 4*((k//2) % 8), 4)}, v{vLDS} offset:{lds_off(self.R,k)}')
        def first(self, hook=None):
            if stamps:
                a(f's_lshr_b32 s89, s{sPUB2}, 17'); a('s_sub_u32 s89, s89, 8')
            stamp((89, 4, 9), vt=vT1)
            build_bq()
            def hk(idx):
                if hook: hook(idx)
                if 6 <= idx < 10:
                    self.rd(4*(idx-6)); self.rd(4*(idx-6) + 2)
            kphase_fast(self.R, [5, 0, 1, 6, 7, 8, 2, 3, 4, 9], self.S, self.u, hk)
            a(f's_add_u32 s{sQ2}, s{sQ2}, 8192')
        def second(self, hook=None):
            R, S, nmc, Dacc, Bb, TT = self.R, self.S, self.nmc, self.Dacc, self.Bb, self.TT
            issued = list(range(0, 16, 2)); ldsq = list(range(16, 36, 2))
            max_phase(S, nmc, self.t2)
            for o in exp_ops(S, nmc, nmc + 1, True): a(o)
            eq = [o for c in range(1, 10) for o in exp_ops(S + c, nmc, nmc + 1, False)]
            for o in and_ops(Bb, S, 0): a(o)
            for m in range(19):
                B = Bb + 4*(m % 2); Bn = Bb + 4*((m+1) % 2)
                nxt = and_ops(Bn, S + (m+1)//2, (m+1) % 2) if m < 18 else []
                k0 = 2*m
                if hook: hook(m)
                if m % 2 == 0:
                    for _ in range(4):
                        if eq: a(eq.pop(0))
                if m < 18:
                    cnt = len(issued) - 1 - issued.index(k0)
                    a(f's_waitcnt lgkmcnt({cnt})')
                    a(pv_mfma(vr(TT + 4*(m % 8), 4), B, Dacc, m == 0))
                    a(nxt[0]); a(nxt[1])
                    a(pv_mfma(vslot(R, k0 + 1), B, Dacc + 4, m == 0))
                    a(nxt[2]); a(nxt[3])
                    if ldsq:
                        k = ldsq.pop(0); self.rd(k); issued.append(k)
                else:
                    a(pv_mfma(vslot(R, 36), B, Dacc, False))
            ml_write(nmc, 2 + R)
            if hook: hook(19)
            publish(Dacc, 2 + R, sPUB2)
            stamp((89, 4, 10), vt=vT1)
            a(f's_add_u32 s{sPUB2}, s{sPUB2}, 131072')

    def endp1(R):
        publish(vD1, R, sPUB1)
        stamp((sB, 4, 8), vt=vT1)
    def nextb():
        a(f's_add_u32 s{sPUB1}, s{sPUB1}, 131072')
        a(f's_add_u32 s{sB}, s{sB}, 1')

    def main(R):
        a.label(f'Lmain{R}')
        a.fence()
        vm.reset(['q1'] + [(0, n) for n in range(D)])
        soff_known[0] = None
        nn = [D]
        pts = [round(i * 19 / (NPB - 1)) for i in range(NPB)]
        def hk2(m):
            if m in pts:
                vm.wait((0, nn[0] - D)); load(nn[0], R, 0); nn[0] += 1
        P2(R).second(hk2)
        assert nn[0] == D + NPB
        a.label(f'Lmainpost{R}')
        a.fence()
        soff_known[0] = None
        qwait_blocking(sQ1, True)
        build_bq()
        pretouch(sPUB1)
        for ci in range(NPB): compute1(R, ci)
        for n in range(D + NPB, 74):
            vm.wait((0, n - D))
            if n == 74 - D: qload(sQ2, 'poll', dual=True)
            load(n, R, 0)
            compute1(R, n - D)
        a(f's_add_u32 s{sBASE}, s{sBASE}, 0x2000000'); soff_known[0] = None
        a(f's_add_u32 s{sQ1}, s{sQ1}, 8192')
        saved = list(vm.q)
        if R == 1:
            a(f's_cmp_eq_u32 s{sB}, 7')
            a(f's_cbranch_scc1 Lalt{R}')
        vm.wait('poll')
        qcheck()
        a(f's_cbranch_vccnz Lalt{R}')
        nn = [74]
        def step():
            n = nn[0]; nn[0] += 1
            vm.wait((0, n - D)); load(n - 74, 1 - R, 1)
        def hkx(idx):
            if idx == 2: qload(sQ1, 'q1')
            if idx in (2, 6, 10): step()
        P2(1 - R).first(hkx)
        for ci in range(74 - D, nn[0] - D): compute1(R, ci)
        while nn[0] < 74 + D:
            step(); compute1(R, nn[0] - 1 - D)
        endp1(R)
        nextb()
        a(f's_branch Lmain{1-R}')
        a.label(f'Lalt{R}')
        a.fence()
        vm.reset(saved); soff_known[0] = None
        qload(sQ2, 'poll2', dual=True)
        for ci in range(74 - D, 74):
            vm.wait((0, ci)); compute1(R, ci)
        endp1(R)
        stamp((sB, 4, 11), vt=vT1)
        nextb()
        vm.wait('poll2')
        qwait_blocking(sQ2, True)
        if R == 1:
            a(f's_cmp_eq_u32 s{sB}, 8')
            a('s_cbranch_scc1 Lfin')
        def hky(idx):
            if idx == 2:
                qload(sQ1, 'q1')
                for n in range(D): load(n, 1 - R, 1)
        P2(1 - R).first(hky)
        a(f's_branch Lmain{1-R}')

    main(1)
    main(0)

    a.label('Lfin')
    a.fence()
    p = P2(0); p.first(); p.second()
    pretouch(sPUB2)
    qwait_blocking(sQ2, False)
    p = P2(1); p.first(); p.second()
    a('s_branch Lend')

    from gen_chain import chain
    chain(a, locals())

    a.label('Lend')
    if stamps:
        a('s_mov_b64 exec, -1')
        a('v_mbcnt_lo_u32_b32 v0, -1, 0'); a('v_mbcnt_hi_u32_b32 v0, -1, v0')
        a('v_lshlrev_b32 v0, 4, v0'); a(f'v_add_u32 v1, s{sSTO}, v0')
        a('s_waitcnt lgkmcnt(0)')
        a('ds_read_b128 v[4:7], v1')
        a(f's_lshl_b32 s97, s2, 2'); a(f's_add_u32 s97, s97, s{sW}'); a('s_lshl_b32 s97, s97, 10'); a(f's_add_u32 s97, s97, {STAMP}')
        a('s_waitcnt lgkmcnt(0)')
        a(f'buffer_store_dwordx4 v[4:7], v0, s[{S_WS}:{S_WS+3}], s97 offen')
    a.label('Lend2')
    a('s_endpgm')
    a.raw('.section .rodata,"a"')
    a.raw('.p2align 6')
    a.raw(f'.amdhsa_kernel {NAME}_kernel')
    a.raw('  .amdhsa_next_free_vgpr 512')
    a.raw('  .amdhsa_next_free_sgpr 102')
    a.raw('  .amdhsa_accum_offset 256')
    a.raw('  .amdhsa_group_segment_fixed_size 0')
    a.raw('  .amdhsa_kernarg_size 96')
    a.raw('  .amdhsa_user_sgpr_count 2')
    a.raw('  .amdhsa_user_sgpr_kernarg_segment_ptr 1')
    a.raw('  .amdhsa_system_sgpr_workgroup_id_x 1')
    a.raw('  .amdhsa_float_denorm_mode_32 3')
    a.raw('.end_amdhsa_kernel')
    return a

if __name__ == '__main__':
    import argparse
    ap = argparse.ArgumentParser()
    ap.add_argument('-o', default=f'cdna_kernels/{NAME}.s')
    ap.add_argument('-D', type=int, default=8)
    ap.add_argument('--stamps', action='store_true')
    ap.add_argument('--spin', type=int, default=SPIN)
    ap.add_argument('--nonlocal', dest='nl', action='store_true')
    ap.add_argument('--lpoll', default='sc1')
    ap.add_argument('--noptouch', action='store_true')
    ap.add_argument('--nowpf', action='store_true')
    args = ap.parse_args()
    a = gen(D=args.D, stamps=args.stamps, force_nonlocal=args.nl, spin=args.spin, lpoll=args.lpoll, wpf=not args.nowpf, ptouch=not args.noptouch)
    open(args.o, 'w').write(a.text())
    print('instrs', a.nins, 'auto nops', a.nnop, 'bytes', len(a.text()))
```

```python
from asmlib import vr
import gen as G

def chain(a, env):
    f32 = G.f32; DPPF = G.DPPF
    L = env['L']; srd = env['srd']; stamp = env['stamp']; spin_dec = env['spin_dec']
    S_WS = env['S_WS']; S_DBG = env['S_DBG']
    sX, sT, sW, sVAL, sLOCAL, sHI = (env[k] for k in ('sX', 'sT', 'sW', 'sVAL', 'sLOCAL', 'sHI'))
    force_nonlocal = env['force_nonlocal']; local_or = env['local_or']; lpoll = env['lpoll']
    vm = G.VM(a)
    WS = f's[{S_WS}:{S_WS+3}]'

    S_WQ, S_G, S_U, S_XI, S_WO, S_WD, S_OUT = 4, 8, 12, 16, 40, 44, 48
    sS, sJA, sJB, sP2W, sP2R, sHW, sQW, sDES, sOUTO = 28, 29, 30, 31, 34, 35, 36, 37, 38
    sM2 = 52
    sM1 = 54
    vBF, vL16, vL8, vST, vH, vHS, vQS, vXR, vXW, vOW, vML, vSTW, vSTR = range(1, 14)
    vTa, vTb = 14, 15
    vX = 16; vD = 20; vR = 28; vTc = 30; vTd = 31; vB = 32
    XR = 0; XB = 18432; XS = 1056; STATS = 26880; STG = 32768
    OB = XB; XB1 = XB + 2*XS; XB2 = XB + 4*XS
    def wq(t, c): return vr(4*(2*c + t), 4, 'a')
    def wo(t, c): return vr(128 + 4*(2*c + t), 4, 'a')
    def wg(c): return vr(80 + 4*c, 4)
    def wu(c): return vr(144 + 4*c, 4)
    def wd(t, c): return vr(208 + 4*(2*c + t), 4)

    def exec_set(lo, hi):
        a(f's_mov_b32 exec_lo, {lo}'); a(f's_mov_b32 exec_hi, {hi}')
    def exec_all(): a('s_mov_b64 exec, -1')

    a.label('Lchain')
    a('s_load_dwordx2 s[72:73], s[0:1], 0')
    a('s_load_dwordx4 s[76:79], s[0:1], 24')
    a('s_load_dwordx8 s[80:87], s[0:1], 48')
    a(f'v_lshlrev_b32 v{vL16}, 4, v0')
    a(f'v_lshlrev_b32 v{vL8}, 3, v0')
    a(f'v_lshrrev_b32 v{vTa}, 4, v0')
    a(f'v_and_b32 v{vTb}, 15, v0')
    a(f's_lshl_b32 s57, s{sX}, 2')
    a(f's_add_u32 s57, s57, s{sT}')
    a('s_waitcnt lgkmcnt(0)')
    srd(S_WS, 70, 71, hex(G.WS_BYTES)); srd(S_XI, 72, 73, '8192')
    srd(S_WQ, 76, 77, '0x400000')
    a(f'v_lshlrev_b32 v{vTc}, 5, v0')
    a(f's_lshl_b32 s58, s{sW}, 11')
    a(f'buffer_load_dwordx4 {vr(vB,4)}, v{vTc}, s[{S_XI}:{S_XI+3}], s58 offen'); vm.issue('x')
    a(f'buffer_load_dwordx4 {vr(vB+4,4)}, v{vTc}, s[{S_XI}:{S_XI+3}], s58 offen offset:16'); vm.issue('x')
    vCB = 64
    vWA = 65; vWB = 66; vWT = 67; vTR0 = 68; vTR1 = 69; vGU = 70; vTA0 = 71; vTA1 = 72
    a(f'v_lshrrev_b32 v{vCB}, 1, v{vTb}')
    a(f'v_xor_b32 v{vCB}, v{vCB}, v{vTa}')
    a(f'v_lshlrev_b32 v{vCB}, 5, v{vCB}')
    a(f'v_and_b32 v{vWT}, 1, v{vTb}')
    a(f'v_lshl_add_u32 v{vCB}, v{vWT}, 4, v{vCB}')
    a(f's_lshl_b32 s60, s{sW}, 13'); a(f's_add_u32 s60, s60, {STG}')

    def wide_setup(log2stride, sbase, rows_per_wave):
        a(f's_mul_i32 s58, s{sW}, {rows_per_wave << log2stride}')
        a(f's_add_u32 s58, s58, s{sbase}')
        a(f'v_lshl_add_u32 v{vWA}, v{vTa}, {log2stride}, v{vCB}')
        a(f'v_xor_b32 v{vWB}, 128, v{vWA}')
        a(f'v_add_u32 v{vWA}, s58, v{vWA}')
        a(f'v_add_u32 v{vWB}, s58, v{vWB}')

    def issue_task(k):
        slot = k % 4
        if k < 8:
            S = S_WQ if k < 4 else S_WO
            ls = 13 if k < 4 else 10
            if k == 0:
                a('s_lshl_b32 s59, s57, 8'); wide_setup(13, 59, 32)
            if k == 4:
                a(f's_lshl_b32 s59, s{sX}, 19'); a(f's_lshl_b32 s61, s{sT}, 8'); a('s_add_u32 s59, s59, s61')
                wide_setup(10, 59, 32)
            for m in range(8):
                src = vWA if (m >> 1) & 1 == 0 else vWB
                a(f's_add_u32 m0, s60, {slot*32768 + m*1024}')
                a(f'v_add_u32 v{vWT}, {((k % 4)*128 + 4*m) << ls}, v{src}')
                a(f'buffer_load_dwordx4 v{vWT}, s[{S}:{S+3}], 0 offen nt lds'); vm.issue(('t', k))
        elif k < 12:
            S = S_G if k < 10 else S_U
            for m in range(8):
                c = (k % 2)*8 + m
                a(f's_add_u32 m0, s60, {slot*32768 + m*1024}')
                a(f'v_add_u32 v{vWT}, {c*32*2752}, v{vGU}')
                a(f'buffer_load_dwordx4 v{vWT}, s[{S}:{S+3}], 0 offen lds'); vm.issue(('t', k))
        else:
            if k == 12:
                a(f's_mul_i32 s59, s{sX}, {192*1024}'); a(f's_lshl_b32 s61, s{sT}, 8'); a('s_add_u32 s59, s59, s61')
                wide_setup(10, 59, 32)
                for m in range(8):
                    src = vWA if (m >> 1) & 1 == 0 else vWB
                    a(f's_add_u32 m0, s60, {slot*32768 + m*1024}')
                    a(f'v_add_u32 v{vWT}, {(4*m) << 10}, v{src}')
                    a(f'buffer_load_dwordx4 v{vWT}, s[{S_WD}:{S_WD+3}], 0 offen nt lds'); vm.issue(('t', k))
            else:
                wide_setup(10, 59, 16)
                a(f's_lshl_b32 s61, s{sW}, 12')
                for m in range(4):
                    src = vWA if (m >> 1) & 1 == 0 else vWB
                    a(f's_add_u32 m0, s61, {STG + slot*32768 + m*1024}')
                    a(f'v_add_u32 v{vWT}, {(128 + 4*m) << 10}, v{src}')
                    a(f'buffer_load_dwordx4 v{vWT}, s[{S_WD}:{S_WD+3}], 0 offen nt lds'); vm.issue(('t', k))

    def half(reg, h):
        k = reg[0]; lo = int(reg[2:reg.index(':')])
        return vr(lo + 2*h, 2, k)

    def read_task(k):
        slot = k % 4
        if k < 8 or k >= 12:
            a(f'v_add_u32 v{vTA0}, {STG + slot*32768}, v{vTR0}')
            a(f'v_add_u32 v{vTA1}, {STG + slot*32768}, v{vTR1}')
            ncs = 2 if k == 13 else 4
            n = 0
            for cc in range(ncs):
                for t in range(2):
                    if k < 4: fr = wq(t, 4*k + cc)
                    elif k < 8: fr = wo(t, 4*(k-4) + cc)
                    else: fr = wd(t, 4*(k-12) + cc)
                    for h in range(2):
                        a(f'ds_read_b64_tr_b16 {half(fr,h)}, v{vTA0 + t} offset:{cc*8192 + h*1024}')
                        n += 1
                        if n == 12: a('s_waitcnt lgkmcnt(4)')
        else:
            a(f'v_add_u32 v{vTA0}, s60, v{vL8}')
            a(f'v_add_u32 v{vTA0}, {slot*32768}, v{vTA0}')
            n = 0
            for m in range(8):
                c = (k % 2)*8 + m
                fr = wg(c) if k < 10 else wu(c)
                for h in range(2):
                    a(f'ds_read_b64_tr_b16 {half(fr,h)}, v{vTA0} offset:{m*1024 + h*512}')
                    n += 1
                    if n == 12: a('s_waitcnt lgkmcnt(4)')
        a('s_waitcnt lgkmcnt(0)')

    srd(S_DBG, 68, 69, '256')
    issue_task(0); issue_task(1)
    for r in range(4): a(f'v_mov_b32 v{vD+r}, -1')
    a(f's_lshl_b32 s58, s{sT}, 13'); a(f's_lshl_b32 s59, s{sX}, 10')
    a(f's_add_u32 s{sP2W}, s58, s59'); a(f's_add_u32 s{sP2W}, s{sP2W}, {G.P2B}')
    a(f's_lshl_b32 s58, s{sW}, 15'); a(f's_add_u32 s58, s58, s{sP2W}')
    for k in range(5):
        a(f'buffer_store_dwordx4 {vr(vD,4)}, v{vL16}, {WS}, s58 offen sc1'); vm.issue('init')
        if k < 4: a('s_add_u32 s58, s58, 0x20000')
    a(f's_add_u32 s{sHW}, s59, {G.HB}')
    a(f's_lshl_b32 s58, s{sT}, 2'); a(f's_add_u32 s58, s58, s{sW}'); a('s_lshl_b32 s58, s58, 13')
    a(f's_add_u32 s58, s58, s{sHW}')
    a(f'buffer_store_dwordx4 {vr(vD,4)}, v{vL16}, {WS}, s58 offen sc1'); vm.issue('init')
    a(f's_lshl_b32 s{sQW}, s57, 8'); a(f's_add_u32 s{sQW}, s{sQW}, {G.QB}')
    a(f'v_lshlrev_b32 v{vTc}, 13, v{vTa}')
    a(f'v_lshl_add_u32 v{vTc}, v{vTb}, 4, v{vTc}')
    a(f's_lshl_b32 s58, s{sW}, 15'); a(f's_add_u32 s58, s58, s{sQW}')
    a(f'buffer_store_dwordx4 {vr(vD,4)}, v{vTc}, {WS}, s58 offen sc1'); vm.issue('init')

    stamp(0, vt=vTc)

    srd(S_WO, 78, 79, '0x400000'); srd(S_WD, 84, 85, hex(1376*1024)); srd(S_OUT, 86, 87, '8192')
    a(f's_mul_i32 s58, s{sX}, 12'); a(f's_mul_i32 s59, s{sT}, 3'); a(f's_add_u32 s59, s59, s{sW}')
    a('s_add_u32 s58, s58, s59')
    a('s_cmp_lt_u32 s58, 86'); a(f's_cselect_b32 s61, {512*2752}, 0')
    a(f's_cmp_lt_u32 s{sW}, 3'); a('s_cselect_b32 s61, s61, 0')
    srd(S_G, 80, 81, 's61'); srd(S_U, 82, 83, 's61')
    a(f'v_bfe_u32 v{vGU}, v0, 3, 2'); a(f'v_lshlrev_b32 v{vGU}, 3, v{vGU}')
    a(f'v_lshrrev_b32 v{vWT}, 5, v0'); a(f'v_lshl_add_u32 v{vGU}, v{vWT}, 2, v{vGU}')
    a(f'v_bfe_u32 v{vWT}, v0, 1, 2'); a(f'v_add_u32 v{vGU}, v{vGU}, v{vWT}')
    a(f'v_mul_u32_u24 v{vGU}, 2752, v{vGU}')
    a(f'v_and_b32 v{vWT}, 1, v0'); a(f'v_lshl_add_u32 v{vGU}, v{vWT}, 4, v{vGU}')
    a('s_lshl_b32 s58, s58, 5'); a(f'v_add_u32 v{vGU}, s58, v{vGU}')
    a(f'v_lshrrev_b32 v{vTc}, 2, v{vTb}')
    a(f'v_and_b32 v{vTd}, 1, v{vTa}'); a(f'v_lshl_add_u32 v{vTd}, v{vTd}, 2, v{vTc}')
    a(f's_lshl_b32 s58, s{sW}, 1')
    a(f'v_xor_b32 v{vTd}, s58, v{vTd}')
    a(f'v_lshl_add_u32 v{vTc}, v{vTa}, 3, v{vTc}')
    a(f'v_lshlrev_b32 v{vTc}, 8, v{vTc}')
    a(f'v_lshl_add_u32 v{vTR0}, v{vTd}, 5, v{vTc}')
    a(f'v_and_b32 v{vTc}, 3, v{vTb}'); a(f'v_lshl_add_u32 v{vTR0}, v{vTc}, 3, v{vTR0}')
    a(f'v_xor_b32 v{vTR1}, 32, v{vTR0}')
    a(f'v_lshlrev_b32 v{vHS}, 9, v{vTb}'); a(f'v_lshl_add_u32 v{vHS}, v{vTa}, 3, v{vHS}')
    a('s_lshl_b32 s58, s59, 5'); a(f'v_add_u32 v{vHS}, s58, v{vHS}')
    a(f'v_lshlrev_b32 v{vST}, 9, v{vTb}'); a(f'v_lshl_add_u32 v{vST}, v{vTa}, 4, v{vST}')
    a(f's_lshl_b32 s58, s{sW}, 7'); a(f'v_add_u32 v{vST}, s58, v{vST}')
    a(f'v_lshlrev_b32 v{vQS}, 13, v{vTb}'); a(f'v_lshl_add_u32 v{vQS}, v{vTa}, 3, v{vQS}')
    a(f's_lshl_b32 s58, s{sW}, 6'); a(f'v_add_u32 v{vQS}, s58, v{vQS}')
    a(f'v_and_b32 v{vTc}, 1, v{vTb}')
    a(f'v_lshlrev_b32 v{vH}, 9, v{vTc}'); a(f'v_lshl_add_u32 v{vH}, v{vTa}, 4, v{vH}')
    a(f'v_and_b32 v{vTd}, 7, v{vTb}'); a(f'v_mul_u32_u24 v{vBF}, {XS}, v{vTd}'); a(f'v_lshl_add_u32 v{vBF}, v{vTa}, 4, v{vBF}')
    a(f'v_cmp_eq_u32 vcc, 7, v{vTd}'); a(f'v_cndmask_b32 v{vML}, v{vTd}, 0, vcc')
    a(f'v_lshlrev_b32 v{vML}, 3, v{vML}'); a(f'v_add_u32 v{vML}, 3584, v{vML}')
    a(f'v_lshrrev_b32 v{vOW}, 3, v{vTb}'); a(f'v_lshl_add_u32 v{vOW}, v{vOW}, 4, v{vTd}'); a(f'v_lshl_add_u32 v{vOW}, v{vTa}, 5, v{vOW}')
    a(f'v_lshlrev_b32 v{vOW}, 1, v{vOW}'); a(f's_lshl_b32 s58, s{sW}, 8'); a(f'v_add_u32 v{vOW}, s58, v{vOW}')
    a(f'v_and_b32 v{vTc}, 31, v0'); a(f'v_lshlrev_b32 v{vTc}, 3, v{vTc}'); a(f'v_add_u32 v{vTc}, s58, v{vTc}')
    a(f'v_lshrrev_b32 v{vTd}, 5, v0')
    a(f'v_lshl_add_u32 v{vXR}, v{vTd}, 13, v{vTc}')
    a(f'v_mul_u32_u24 v{vXW}, {XS}, v{vTd}'); a(f'v_add_u32 v{vXW}, v{vXW}, v{vTc}')
    a(f'v_lshlrev_b32 v{vSTR}, 5, v{vTd}')
    a(f's_lshl_b32 s58, s{sW}, 3'); a(f'v_add_u32 v{vSTW}, s58, v{vSTR}')
    a(f's_mov_b32 s{sM2}, 0x00030003'); a(f's_mov_b32 s{sM2+1}, 0x00030003')
    a(f's_mov_b32 s{sM1}, 0x00010001'); a(f's_mov_b32 s{sM1+1}, 0x00010001')

    def ln_finish(s1, s2, u):
        a(f'v_mul_f32 v{s1}, {f32(1/512)}, v{s1}')
        a(f'v_mul_f32 v{s2}, {f32(1/512)}, v{s2}')
        a(f'v_fma_f32 v{s2}, -v{s1}, v{s1}, v{s2}')
        a(f'v_max_f32 v{s2}, 0, v{s2}')
        a(f'v_cvt_pk_bf16_f32 v{u}, v{s1}, v{s2}')
        a(f'v_and_b32 v{s2}, s{sHI}, v{u}')
        a(f'v_lshlrev_b32 v{s1}, 16, v{u}')
        a(f'v_add_f32 v{s2}, {f32(1e-5)}, v{s2}')
        a(f'v_cvt_pk_bf16_f32 v{u}, v{s2}, v{s2}')
        a(f'v_and_b32 v{s2}, s{sHI}, v{u}')
        a(f'v_sqrt_f32 v{s2}, v{s2}')
        return [f'v_cvt_pk_bf16_f32 v{u}, v{s2}, v{s2}', f'v_and_b32 v{s2}, s{sHI}, v{u}', f'v_rcp_f32 v{s2}, v{s2}']

    def normalize(xs, ds, outs, mb, rs, tail):
        n = len(xs)
        for i in range(n): a(f'v_sub_f32 v{ds[i]}, v{xs[i]}, v{mb}')
        for o in tail: a(o)
        for i in range(0, n, 2): a(f'v_cvt_pk_bf16_f32 v{outs[i//2]}, v{ds[i]}, v{ds[i+1]}')
        for i in range(0, n, 2):
            a(f'v_lshlrev_b32 v{ds[i]}, 16, v{outs[i//2]}'); a(f'v_and_b32 v{ds[i+1]}, s{sHI}, v{outs[i//2]}')
        for i in range(n): a(f'v_mul_f32 v{ds[i]}, v{ds[i]}, v{rs}')
        for i in range(0, n, 2): a(f'v_cvt_pk_bf16_f32 v{outs[i//2]}, v{ds[i]}, v{ds[i+1]}')

    def row16_sum2(p, q):
        for pat in ('quad_perm:[1,0,3,2]', 'quad_perm:[2,3,0,1]', 'row_half_mirror', 'row_mirror'):
            a(f'v_add_f32_dpp v{p}, v{p}, v{p} {pat} {DPPF}')
            a(f'v_add_f32_dpp v{q}, v{q}, v{q} {pat} {DPPF}')

    vm.wait('x')
    a(f'v_lshlrev_b32 v{vTc}, 5, v0'); a(f's_lshl_b32 s58, s{sW}, 11'); a(f'v_add_u32 v{vTc}, s58, v{vTc}')
    a(f'ds_write_b128 v{vTc}, {vr(vB,4)} offset:{XR}')
    a(f'ds_write_b128 v{vTc}, {vr(vB+4,4)} offset:{XR+16}')
    a(f'v_mov_b32 v{vD+4}, 0'); a(f'v_mov_b32 v{vD+5}, 0')
    a(f's_lshl_b32 s58, s{sW}, 9'); a(f'v_add_u32 v{vTc}, s58, v{vL8}')
    a(f'ds_write_b64 v{vTc}, {vr(vD+4,2)} offset:{XR+8192}')
    xs = list(range(vB+8, vB+24))
    for i in range(8):
        a(f'v_lshlrev_b32 v{xs[2*i]}, 16, v{vB+i}'); a(f'v_and_b32 v{xs[2*i+1]}, s{sHI}, v{vB+i}')
    s1, s2, u = vX, vX+1, vX+2
    a(f'v_add_f32 v{s1}, v{xs[0]}, v{xs[1]}'); a(f'v_mul_f32 v{s2}, v{xs[0]}, v{xs[0]}'); a(f'v_fmac_f32 v{s2}, v{xs[1]}, v{xs[1]}')
    for i in range(2, 16):
        a(f'v_add_f32 v{s1}, v{s1}, v{xs[i]}'); a(f'v_fmac_f32 v{s2}, v{xs[i]}, v{xs[i]}')
    row16_sum2(s1, s2)
    a(f'ds_swizzle_b32 v{vTc}, v{s1} offset:0x401F'); a(f'ds_swizzle_b32 v{vTd}, v{s2} offset:0x401F')
    a('s_waitcnt lgkmcnt(0)')
    a(f'v_add_f32 v{s1}, v{s1}, v{vTc}'); a(f'v_add_f32 v{s2}, v{s2}, v{vTd}')
    tail = ln_finish(s1, s2, u)
    normalize(xs, xs, list(range(vB, vB+8)), s1, s2, tail)
    a(f'v_lshrrev_b32 v{vTd}, 5, v0'); a(f'v_mul_u32_u24 v{vTd}, {XS}, v{vTd}')
    a(f'v_and_b32 v{vTc}, 31, v0'); a(f'v_lshl_add_u32 v{vTc}, v{vTc}, 5, v{vTd}')
    a(f's_mul_i32 s58, s{sW}, {2*XS}'); a(f'v_add_u32 v{vTc}, s58, v{vTc}')
    a(f'ds_write_b128 v{vTc}, {vr(vB,4)} offset:{XB}')
    a(f'ds_write_b128 v{vTc}, {vr(vB+4,4)} offset:{XB+16}')
    a('s_waitcnt lgkmcnt(0)')

    def gemv(off, chains, nk=16, ring=12):
        for c in range(min(ring, nk)):
            a(f'ds_read_b128 {vr(vB+4*c,4)}, v{vBF} offset:{off + c*64}')
        issued = min(ring, nk)
        for c in range(nk):
            a(f's_waitcnt lgkmcnt({issued - 1 - c})')
            for (Dr, fn) in chains:
                a(f'v_mfma_f32_16x16x32_bf16 {vr(Dr,4)}, {fn(c)}, {vr(vB+4*(c % ring),4)}, {"0" if c == 0 else vr(Dr,4)}')
            if issued < nk:
                a(f'ds_read_b128 {vr(vB+4*(issued % ring),4)}, v{vBF} offset:{off + issued*64}')
                issued += 1

    def q_store(mask_lo, flagged):
        for t in range(2):
            a(f'v_cvt_pk_bf16_f32 v{vD+4*t}, v{vD+4*t}, v{vD+4*t+1}')
            a(f'v_cvt_pk_bf16_f32 v{vD+4*t+1}, v{vD+4*t+2}, v{vD+4*t+3}')
        for t in range(2):
            a(f'v_min_u32 v{vD+4*t}, -2, v{vD+4*t}'); a(f'v_min_u32 v{vD+4*t+1}, -2, v{vD+4*t+1}')
        exec_set(mask_lo, mask_lo)
        def st(fl):
            for t in range(2):
                a(f'buffer_store_dwordx2 {vr(vD+4*t,2)}, v{vQS}, {WS}, s{sQW} offen offset:{t*32} {fl}')
        if flagged: local_or_sc1(st)
        else: st('sc1')
        exec_all()

    def local_or_sc1(st):
        nl, dn = L('nl'), L('dn')
        a(f's_cmp_eq_u32 s{sLOCAL}, 0'); a(f's_cbranch_scc1 {nl}')
        st(''); a(f's_branch {dn}')
        a.label(nl); st('sc1'); a.label(dn)

    NT = 14
    for k in range(NT):
        stamp(192 + k, vt=vTc)
        vm.wait(('t', k))
        stamp(176 + k, vt=vTc)
        a('s_barrier')
        stamp(160 + k, vt=vTc)
        if k == 2:
            assert 'init' not in vm.q
            sk = L('cat')
            a(f's_cmp_lg_u32 s{sW}, 0'); a(f's_cbranch_scc1 {sk}')
            a(f's_lshl_b32 s58, s{sX}, 5'); a(f'v_mov_b32 v{vTc}, s{sVAL}')
            a('s_mov_b64 exec, 1')
            a(f'buffer_atomic_add v{vTc}, off, s[{S_DBG}:{S_DBG+3}], s58 sc1')
            exec_all()
            a.label(sk)
        if k != 3 and k + 2 < NT: issue_task(k + 2)
        if k == 5:
            a(f'v_and_b32 v{vTc}, 1, v0'); a(f'v_mul_u32_u24 v{vBF}, {XS}, v{vTc}'); a(f'v_lshl_add_u32 v{vBF}, v{vTa}, 4, v{vBF}')
            a(f'v_mov_b32 v{vTc}, 0'); a(f's_lshl_b32 s58, s{sW}, 8')
            a(f'v_lshl_add_u32 v{vTd}, v0, 2, s58')
            a(f'ds_write_b32 v{vTd}, v{vTc} offset:{OB + XS}')
        read_task(k)
        if k == 3:
            gemv(XB, [(vD, lambda c: wq(0, c)), (vD+4, lambda c: wq(1, c))], ring=8)
            q_store('0x00ff00ff', False)
            a(f's_add_u32 s{sQW}, s{sQW}, {8*8192}')
            stamp(1, vt=vTc)
            issue_task(5)
    stamp(2, vt=vTc)

    lp = L('cfl')
    a(f'v_and_b32 v{vTc}, 7, v0'); a(f'v_lshlrev_b32 v{vTc}, 5, v{vTc}')
    a.label(lp)
    spin_dec()
    a(f'buffer_load_dword v{vTd}, v{vTc}, s[{S_DBG}:{S_DBG+3}], 0 offen sc1')
    a('s_waitcnt vmcnt(0)')
    a(f'v_and_b32 v{vB}, 63, v{vTd}')
    a(f'v_cmp_ne_u32 vcc, 32, v{vB}')
    a(f's_cbranch_vccnz {lp}')
    a(f'v_readlane_b32 s58, v{vTd}, s{sX}')
    a(f's_lshl_b32 s59, s{sVAL}, 5')
    a('s_cmp_eq_u32 s58, s59')
    a(f's_cselect_b32 s{sLOCAL}, {0 if force_nonlocal else 1}, 0')
    stamp(3, vt=vTc)

    a(f's_mov_b32 s{sS}, 0')
    a(f's_lshl_b32 s58, s{sX}, 2'); a(f's_add_u32 s58, s58, s{sW}')
    a(f's_lshl_b32 s{sJA}, s58, 12')
    a(f's_add_u32 s{sJB}, s{sJA}, {6*131072}')
    a(f's_lshl_b32 s{sP2R}, s{sW}, 13'); a(f's_add_u32 s{sP2R}, s{sP2R}, {G.P2B}')
    a(f's_mov_b32 s{sDES}, s2')
    a(f's_mov_b32 s{sOUTO}, {(-2048) & 0xffffffff}')

    def combine(sJ, row):
        lp, ok = L('cb'), L('cbok')
        ML = vB; O = vB + 2; M = vB + 16; W = vB + 17; Ls = vB + 18; A = vB + 20
        a.label(lp)
        spin_dec()
        def lds_(fl):
            a(f'buffer_load_dwordx2 {vr(ML,2)}, v{vML}, {WS}, s{sJ} offen {fl}')
            for s in range(7):
                a(f'buffer_load_dwordx2 {vr(O+2*s,2)}, v{vL8}, {WS}, s{sJ} offen offset:{s*512} {fl}')
        local_or(lds_, lpoll, 'sc1')
        a('s_waitcnt vmcnt(7)')
        a(f'v_max_u32 v{M}, v{ML}, v{ML+1}')
        a(f'v_cmp_eq_u32 vcc, -1, v{M}')
        a(f's_cbranch_vccnz {lp}')
        exec_set('0x80808080', '0x80808080')
        a(f'v_mov_b32 v{ML}, 0x7f800000')
        exec_all()
        a(f'v_min_f32_dpp v{M}, v{ML}, v{ML} quad_perm:[1,0,3,2] {DPPF}')
        a(f'v_min_f32_dpp v{M}, v{M}, v{M} quad_perm:[2,3,0,1] {DPPF}')
        a(f'v_min_f32_dpp v{M}, v{M}, v{M} row_half_mirror {DPPF}')
        a(f'v_sub_f32 v{W}, v{M}, v{ML}')
        a(f'v_exp_f32 v{W}, v{W}')
        a(f'v_mul_f32 v{Ls}, v{W}, v{ML+1}')
        a('s_waitcnt vmcnt(0)')
        lch = [f'v_add_f32_dpp v{Ls}, v{Ls}, v{Ls} quad_perm:[1,0,3,2] {DPPF}',
               f'v_add_f32_dpp v{Ls}, v{Ls}, v{Ls} quad_perm:[2,3,0,1] {DPPF}',
               f'v_add_f32_dpp v{Ls}, v{Ls}, v{Ls} row_half_mirror {DPPF}',
               f'v_rcp_f32 v{Ls}, v{Ls}']
        for s in range(7):
            op = 'v_mul_f32_dpp' if s < 2 else 'v_fmac_f32_dpp'
            for e in range(2):
                a(f'{op} v{A + 2*(s % 2) + e}, v{W}, v{O+2*s+e} row_newbcast:{s} {DPPF}')
            if lch: a(lch.pop(0))
        a(f'v_add_f32 v{A}, v{A}, v{A+2}'); a(f'v_add_f32 v{A+1}, v{A+1}, v{A+3}')
        a(f'v_mul_f32 v{A}, v{A}, v{Ls}'); a(f'v_mul_f32 v{A+1}, v{A+1}, v{Ls}')
        a(f'v_cmp_u_f32 vcc, v{A}, v{A+1}')
        a(f'v_cvt_pk_bf16_f32 v{A}, v{A}, v{A+1}')
        a(f's_cbranch_vccz {ok}')
        a(f'v_max_u32 v{M}, v{O}, v{O+1}')
        for s in range(1, 7): a(f'v_max3_u32 v{M}, v{M}, v{O+2*s}, v{O+2*s+1}')
        a(f'v_cmp_eq_u32 vcc, -1, v{M}')
        a(f's_cbranch_vccnz {lp}')
        a.label(ok)
        a(f'ds_write_b16 v{vOW}, v{A} offset:{OB + row*XS}')
        a(f'ds_write_b16_d16_hi v{vOW}, v{A} offset:{OB + row*XS + 16}')

    def part_store(extra):
        a(f's_add_u32 s58, s{sP2W}, {extra}')
        a(f's_mov_b64 exec, s[{sM2}:{sM2+1}]')
        for t in range(2):
            a(f'buffer_store_dwordx4 {vr(vD+4*t,4)}, v{vST}, {WS}, s58 offen offset:{t*64} sc1')
        exec_all()

    def hop(extra):
        lp, ok = L('hp'), L('hpok')
        Sm = vB + 32
        a(f's_add_u32 s58, s{sP2R}, {extra}'); a('s_add_u32 s59, s58, 4096')
        a.label(lp)
        spin_dec()
        for x in range(8):
            a(f'buffer_load_dwordx4 {vr(vB+4*x,4)}, v{vL16}, {WS}, s{58 + x//4} offen offset:{(x % 4)*1024} sc1')
        a('s_waitcnt vmcnt(6)')
        for r in range(4): a(f'v_add_f32 v{Sm+r}, v{vB+r}, v{vB+4+r}')
        for x in range(2, 8):
            a(f's_waitcnt vmcnt({7-x})')
            for r in range(4): a(f'v_add_f32 v{Sm+r}, v{Sm+r}, v{vB+4*x+r}')
        a(f'v_cmp_u_f32 vcc, v{Sm}, v{Sm+1}')
        a(f'v_cmp_u_f32 s[60:61], v{Sm+2}, v{Sm+3}')
        a('s_or_b64 vcc, vcc, s[60:61]')
        a(f's_cbranch_vccz {ok}')
        a(f'v_max_u32 v{vTc}, v{vB}, v{vB+1}')
        for k in range(1, 16): a(f'v_max3_u32 v{vTc}, v{vTc}, v{vB+2*k}, v{vB+2*k+1}')
        a(f'v_cmp_eq_u32 vcc, -1, v{vTc}')
        a(f's_cbranch_vccnz {lp}')
        a.label(ok)
        return Sm

    def add_resid(Sm):
        a(f'v_cvt_pk_bf16_f32 v{vTc}, v{Sm}, v{Sm+1}'); a(f'v_cvt_pk_bf16_f32 v{vTd}, v{Sm+2}, v{Sm+3}')
        a(f'v_lshlrev_b32 v{Sm}, 16, v{vTc}'); a(f'v_and_b32 v{Sm+1}, s{sHI}, v{vTc}')
        a(f'v_lshlrev_b32 v{Sm+2}, 16, v{vTd}'); a(f'v_and_b32 v{Sm+3}, s{sHI}, v{vTd}')
        for r in range(4): a(f'v_add_f32 v{vX+r}, v{vX+r}, v{Sm+r}')
        a(f'v_cvt_pk_bf16_f32 v{vR}, v{vX}, v{vX+1}'); a(f'v_cvt_pk_bf16_f32 v{vR+1}, v{vX+2}, v{vX+3}')
        unpack_x()
    def unpack_x():
        a(f'v_lshlrev_b32 v{vX}, 16, v{vR}'); a(f'v_and_b32 v{vX+1}, s{sHI}, v{vR}')
        a(f'v_lshlrev_b32 v{vX+2}, 16, v{vR+1}'); a(f'v_and_b32 v{vX+3}, s{sHI}, v{vR+1}')

    def layernorm(st, dst):
        s1, s2, u = vB, vB+1, vB+2
        a(f'v_add_f32 v{s1}, v{vX}, v{vX+1}'); a(f'v_mul_f32 v{s2}, v{vX}, v{vX}')
        a(f'v_add_f32 v{u}, v{vX+2}, v{vX+3}'); a(f'v_fmac_f32 v{s2}, v{vX+1}, v{vX+1}')
        a(f'v_add_f32 v{s1}, v{s1}, v{u}'); a(f'v_fmac_f32 v{s2}, v{vX+2}, v{vX+2}')
        a(f'v_fmac_f32 v{s2}, v{vX+3}, v{vX+3}')
        row16_sum2(s1, s2)
        a(f'v_add_f32_dpp v{s1}, v{s1}, v{s1} row_bcast:15 row_mask:0xa bank_mask:0xf')
        a(f'v_add_f32_dpp v{s2}, v{s2}, v{s2} row_bcast:15 row_mask:0xa bank_mask:0xf')
        exec_set('0x10000', '0x10000')
        a(f'ds_write_b64 v{vSTW}, {vr(s1,2)} offset:{STATS + st*64}')
        exec_all()
        a('s_waitcnt lgkmcnt(0)')
        a('s_barrier')
        a(f'ds_read_b128 {vr(vB+4,4)}, v{vSTR} offset:{STATS + st*64}')
        a(f'ds_read_b128 {vr(vB+8,4)}, v{vSTR} offset:{STATS + st*64 + 16}')
        a('s_waitcnt lgkmcnt(1)')
        a(f'v_add_f32 v{s1}, v{vB+4}, v{vB+6}'); a(f'v_add_f32 v{s2}, v{vB+5}, v{vB+7}')
        a('s_waitcnt lgkmcnt(0)')
        a(f'v_add_f32 v{vB+8}, v{vB+8}, v{vB+10}'); a(f'v_add_f32 v{vB+9}, v{vB+9}, v{vB+11}')
        a(f'v_add_f32 v{s1}, v{s1}, v{vB+8}'); a(f'v_add_f32 v{s2}, v{s2}, v{vB+9}')
        tail = ln_finish(s1, s2, u)
        normalize([vX+r for r in range(4)], [vB+4+r for r in range(4)], [vB+8, vB+9], s1, s2, tail)
        a(f'ds_write_b64 v{vXW}, {vr(vB+8,2)} offset:{dst}')
        a('s_waitcnt lgkmcnt(0)')
        a('s_barrier')

    a.label('Lstep')
    a.fence()
    if env['ptouch']:
        sk = L('cpt')
        a(f's_cmp_eq_u32 s{sLOCAL}, 0'); a(f's_cbranch_scc1 {sk}')
        a(f'v_mov_b32 v{vB}, -1'); a(f'v_mov_b32 v{vB+1}, -1')
        a(f's_cmp_eq_u32 s{sS}, 8'); a(f's_cselect_b32 exec_lo, 0, s{sM1}'); a('s_mov_b32 exec_hi, exec_lo')
        for t in range(2):
            a(f'buffer_store_dwordx2 {vr(vB,2)}, v{vQS}, {WS}, s{sQW} offen offset:{t*32}')
        a(f's_cmp_eq_u32 s{sW}, 3'); a(f's_cselect_b32 exec_lo, 0, s{sM2}'); a('s_mov_b32 exec_hi, exec_lo')
        a(f'buffer_store_dwordx2 {vr(vB,2)}, v{vHS}, {WS}, s{sHW} offen')
        exec_all()
        a('s_nop 1')
        a.label(sk)
    nb = L('nob')
    a(f's_cmp_lt_u32 s{sS}, 2'); a(f's_cbranch_scc1 {nb}')
    combine(sJB, 1)
    a.label(nb)
    nf = L('nofin')
    a(f's_cmp_lg_u32 s{sS}, 8'); a(f's_cbranch_scc1 {nf}')
    a(f's_add_u32 s{sJA}, s{sJA}, {7*131072}')
    exec_set('-1', '0')
    a(f'v_add_u32 v{vXR}, {9*1024}, v{vXR}')
    exec_all()
    a.label(nf)
    a(f'ds_read_b64 {vr(vR,2)}, v{vXR} offset:{XR}')
    a('s_waitcnt lgkmcnt(0)')
    unpack_x()
    stamp((sS, 16, 16), vt=vTc)
    combine(sJA, 0)
    stamp((sS, 16, 17), vt=vTc)
    a('s_waitcnt lgkmcnt(0)')
    a('s_barrier')
    gemv(OB, [(vD, lambda c: wo(0, c)), (vD+4, lambda c: wo(1, c))])
    part_store(0)
    stamp((sS, 16, 18), vt=vTc)
    Sm = hop(0)
    stamp((sS, 16, 19), vt=vTc)
    add_resid(Sm)
    layernorm(0, XB1)
    stamp((sS, 16, 20), vt=vTc)
    nf1 = L('nof1')
    a(f's_cmp_eq_u32 s{sW}, 3'); a(f's_cbranch_scc1 {nf1}')
    gemv(XB1, [(vD, wg), (vD+4, wu)])
    for r in range(4): a(f'v_mul_f32 v{vD+r}, {f32(-G.LOG2E)}, v{vD+r}')
    for r in range(4): a(f'v_exp_f32 v{vD+r}, v{vD+r}')
    for r in range(4): a(f'v_add_f32 v{vD+r}, 1.0, v{vD+r}')
    for r in range(4): a(f'v_rcp_f32 v{vD+r}, v{vD+r}')
    for r in range(4): a(f'v_mul_f32 v{vD+r}, v{vD+r}, v{vD+4+r}')
    a(f'v_cvt_pk_bf16_f32 v{vD}, v{vD}, v{vD+1}'); a(f'v_cvt_pk_bf16_f32 v{vD+1}, v{vD+2}, v{vD+3}')
    a(f'v_min_u32 v{vD}, -2, v{vD}'); a(f'v_min_u32 v{vD+1}, -2, v{vD+1}')
    a(f's_mov_b64 exec, s[{sM2}:{sM2+1}]')
    local_or_sc1(lambda fl: a(f'buffer_store_dwordx2 {vr(vD,2)}, v{vHS}, {WS}, s{sHW} offen {fl}'))
    exec_all()
    a.label(nf1)
    stamp((sS, 16, 21), vt=vTc)
    lp = L('hh')
    a.label(lp)
    spin_dec()
    def hl(fl):
        for c in range(6):
            a(f'buffer_load_dwordx4 {vr(vB+4*c,4)}, v{vH}, {WS}, s{sHW} offen offset:{c*64} {fl}')
    local_or(hl, lpoll, 'sc1')
    for c in range(6):
        a(f's_waitcnt vmcnt({5-c})')
        for t in range(2):
            a(f'v_mfma_f32_16x16x32_bf16 {vr(vD+4*t,4)}, {wd(t,c)}, {vr(vB+4*c,4)}, {"0" if c == 0 else vr(vD+4*t,4)}')
            if c == 0 and t == 0: a(f'v_max_u32 v{vTc}, v{vB}, v{vB+1}')
            else: a(f'v_max3_u32 v{vTc}, v{vTc}, v{vB+4*c+2*t}, v{vB+4*c+2*t+1}')
    a(f'v_cmp_eq_u32 vcc, -1, v{vTc}')
    a('s_nop 4')
    a(f's_cbranch_vccnz {lp}')
    part_store(G.P3B - G.P2B)
    stamp((sS, 16, 22), vt=vTc)
    go = L('go3')
    a(f's_cmp_lg_u32 s{sS}, 8'); a(f's_cbranch_scc1 {go}')
    a(f's_cmp_lg_u32 s{sDES}, 0'); a('s_cbranch_scc1 Lend')
    a.label(go)
    a('s_barrier')
    Sm = hop(G.P3B - G.P2B)
    stamp((sS, 16, 23), vt=vTc)
    add_resid(Sm)
    no = L('noout')
    a(f's_cmp_lg_u32 s{sDES}, 0'); a(f's_cbranch_scc1 {no}')
    a(f's_cmp_lt_u32 s{sS}, 2'); a(f's_cbranch_scc1 {no}')
    a(f'v_and_b32 v{vTc}, 1023, v{vXR}')
    a(f'v_lshrrev_b32 v{vTd}, 5, v0'); a(f'v_xor_b32 v{vTd}, 1, v{vTd}')
    a(f'v_lshl_add_u32 v{vTc}, v{vTd}, 10, v{vTc}')
    a(f'v_add_u32 v{vTc}, s{sOUTO}, v{vTc}')
    a(f's_cmp_eq_u32 s{sS}, 8'); a('s_cselect_b32 exec_lo, -1, 0')
    a(f'buffer_store_dwordx2 {vr(vR,2)}, v{vTc}, s[{S_OUT}:{S_OUT+3}], 0 offen')
    exec_all()
    stamp((sS, 16, 26), vt=vTc)
    a(f's_cmp_eq_u32 s{sS}, 8')
    a('s_cbranch_scc1 Lend')
    a.label(no)
    exec_set('-1', '0')
    a(f'ds_write_b64 v{vXR}, {vr(vR,2)} offset:{XR + 10240}')
    exec_all()
    layernorm(1, XB2)
    stamp((sS, 16, 24), vt=vTc)
    gemv(XB2, [(vD, lambda c: wq(0, c)), (vD+4, lambda c: wq(1, c))])
    q_store('0x00010001', True)
    stamp((sS, 16, 25), vt=vTc)
    a(f's_add_u32 s{sS}, s{sS}, 1')
    a(f's_add_u32 s{sJA}, s{sJA}, 131072'); a(f's_add_u32 s{sJB}, s{sJB}, 131072')
    a(f's_add_u32 s{sP2W}, s{sP2W}, 32768'); a(f's_add_u32 s{sP2R}, s{sP2R}, 32768')
    a(f's_add_u32 s{sHW}, s{sHW}, 8192'); a(f's_add_u32 s{sQW}, s{sQW}, 8192')
    a(f's_add_u32 s{sOUTO}, s{sOUTO}, 1024')
    a(f'v_add_u32 v{vXR}, 1024, v{vXR}')
    a('s_branch Lstep')
```

```python
import sys, struct
sys.path.insert(0, 'gen')
from asmlib import Asm, vr

NAME = 'interleave_layers__gqa_block_cached__glu_gated_glu__decode'
def f32(x): return '0x%08x' % struct.unpack('<I', struct.pack('<f', x))[0]
LOG2E = 1.4426950408889634
SCALE = 128 ** -0.5

PART = 0x000000
P2B = 0x200000
P3B = 0x250000
HB = 0x2A0000
QB = 0x2C0000
STAMP = 0x300000
WS_BYTES = 0x400000
LDS_BYTES = 163840
SPIN = 400000

DPPF = 'row_mask:0xf bank_mask:0xf'

class VM:
    def __init__(self, a): self.a = a; self.q = []
    def reset(self, tags): self.q = list(tags)
    def issue(self, tag): self.q.append(tag)
    def wait(self, tag):
        if tag not in self.q: return
        i = len(self.q) - 1 - self.q[::-1].index(tag)
        n = len(self.q) - 1 - i
        assert n <= 63
        self.a(f's_waitcnt vmcnt({n})')
        self.q = self.q[i+1:]
    def drain(self):
        self.a('s_waitcnt vmcnt(0)'); self.q = []

def gen(D=8, DL=8, cpf=True, NPF=0, PFL=64, D0=8, N0=0, stamps=False, force_nonlocal=False, spin=SPIN, lpoll='sc1', wpf=2, ptouch=True, NF=46, NQ=54, NPB=6):
    assert D <= 12 and DL <= D
    a = Asm()
    uid = [0]
    def L(p):
        uid[0] += 1
        return f'L{p}_{uid[0]}'

    hdr = open(f'cdna_kernels/{NAME}.s.ref').read().split('\n')
    for ln in hdr:
        if ln.startswith('; @launch'): break
        a.raw(ln)
    a.raw(f'; @launch grid=(256,1,1) block=(256,1,1) lds={LDS_BYTES}')
    a.raw('.amdgcn_target "amdgcn-amd-amdhsa--gfx950"')
    a.raw('.text')
    a.raw(f'.globl {NAME}_kernel')
    a.raw('.p2align 8')
    a.raw(f'.type {NAME}_kernel,@function')
    a.raw(f'{NAME}_kernel:')

    S_WS = 20
    S_DBG = 24
    sX, sT, sW, sVAL, sLOCAL, sSPIN = 90, 91, 92, 93, 32, 33
    sSCALE, sHI = 94, 95
    sSTO = 96

    def srd(b, lo, hi, nrec):
        a(f's_mov_b32 s{b}, s{lo}'); a(f's_mov_b32 s{b+1}, s{hi}')
        a(f's_mov_b32 s{b+2}, {nrec}'); a(f's_mov_b32 s{b+3}, 0x20000')

    def stamp(k, vt=0, vt2=None):
        if not stamps: return
        a('s_memrealtime s[98:99]')
        if isinstance(k, int):
            a(f's_add_u32 s97, s{sSTO}, {k*4}')
        else:
            sg, mul, add = k
            a(f's_mul_i32 s97, s{sg}, {mul*4}')
            a(f's_add_u32 s97, s97, s{sSTO}')
            a(f's_add_u32 s97, s97, {add*4}')
        a('s_mov_b64 s[100:101], exec')
        a('s_mov_b64 exec, 1')
        a('s_mov_b32 m0, s97')
        a('s_waitcnt lgkmcnt(0)')
        a(f'v_mov_b32 v{vt}, s98')
        a(f'ds_write_addtid_b32 v{vt}')
        a('s_mov_b64 exec, s[100:101]')

    def spin_dec():
        a(f's_sub_u32 s{sSPIN}, s{sSPIN}, 1')
        a('s_cbranch_scc1 Lend')

    a('s_cmp_ge_u32 s2, 256')
    a('s_cbranch_scc1 Lend2')
    a('s_load_dwordx4 s[64:67], s[0:1], 8')
    a('s_load_dwordx4 s[68:71], s[0:1], 80')
    a('v_lshrrev_b32 v1, 6, v0')
    a('v_and_b32 v0, 63, v0')
    a(f's_and_b32 s{sX}, s2, 7')
    a(f's_lshr_b32 s{sT}, s2, 3')
    a(f'v_readfirstlane_b32 s{sW}, v1')
    a(f's_mov_b32 s{sSPIN}, {spin}')
    a(f's_mov_b32 s{sSCALE}, {f32(SCALE)}')
    a(f's_mov_b32 s{sHI}, 0xffff0000')
    a('s_getreg_b32 s3, hwreg(HW_REG_XCC_ID, 0, 4)')
    a('s_and_b32 s3, s3, 7')
    a(f's_mul_i32 s{sVAL}, s3, s3')
    a(f's_lshl_b32 s{sVAL}, s{sVAL}, 14')
    a('s_lshl_b32 s3, s3, 6')
    a(f's_add_u32 s{sVAL}, s{sVAL}, s3')
    a(f's_add_u32 s{sVAL}, s{sVAL}, 1')
    if stamps:
        a(f's_cmp_lt_u32 s{sT}, 4'); a('s_mov_b32 s97, 9216'); a('s_cselect_b32 s97, 28672, s97'); a(f's_lshl_b32 s{sSTO}, s{sW}, 10'); a(f's_add_u32 s{sSTO}, s{sSTO}, s97')
        a('v_lshlrev_b32 v1, 4, v0'); a(f'v_add_u32 v1, s{sSTO}, v1')
        for r in range(4): a(f'v_mov_b32 v{4+r}, 0')
        a('ds_write_b128 v1, v[4:7]')
        a('s_memrealtime s[98:99]'); a('s_waitcnt lgkmcnt(0)'); a(f's_add_u32 m0, s{sSTO}, 16'); a('v_mov_b32 v4, s98')
        a('s_mov_b64 exec, 1'); a('ds_write_addtid_b32 v4'); a('s_mov_b64 exec, -1')
    a(f's_cmp_lt_u32 s{sT}, 4')
    a('s_cbranch_scc1 Lchain')

    S_K, S_V, S_KL, S_VL = 4, 8, 12, 16
    sBASE, sOFF, sB, sP2D = 28, 29, 30, 31
    sQ2, sQ1, sPUB1, sPUB2, sLDS = 34, 35, 36, 37, 38
    sMT = 40
    sTAIL = 48
    sRET = 50
    sALT = 52
    sW512, sW8, sML = 53, 54, 55
    vT0, vKOFF, vVOFF, vQOFF, vLDS, vT1 = 0, 1, 2, 3, 4, 5
    vP1 = 6; vBQ = 16; vMASK = 32; vQ = 36; vQA = 40; vD1 = 52; vB1 = 60
    RING = 9216 + (4096 if stamps else 0)
    TAU = (0, 2, 1, 3)

    def kslot(R, k):
        if k < 8: return vr(64 + 96*R + 4*k, 4)
        if k < 20: return vr(128*R + 4*(k-8), 4, 'a')
        if k < 36: return vr(64 + 96*R + 4*(k-12), 4)
        return vr(128*R + 48, 4, 'a')
    def vslot(R, k):
        idx = 13 + (18 if k == 36 else (k-1)//2)
        return vr(128*R + 4*idx, 4, 'a')
    def v_in_lds(k): return k % 2 == 0 and k < 36
    def lds_off(R, k): return (R*18 + k//2) * 1024

    vm = VM(a)
    soff_known = [None]
    def load(n, R, tagb):
        isk = n < 37
        k = n if isk else n - 37
        grp = k // 4
        if soff_known[0] != grp:
            a(f's_add_u32 s{sOFF}, s{sBASE}, {grp*4096}')
            soff_known[0] = grp
        io = (k % 4) * 1024
        sr = (S_KL if k == 36 else S_K) if isk else (S_VL if k == 36 else S_V)
        vo = vKOFF if isk else vVOFF
        if (not isk) and v_in_lds(k):
            a(f's_add_u32 m0, s{sLDS}, {lds_off(R, k) - io + RING}')
            a(f'buffer_load_dwordx4 v{vo}, s[{sr}:{sr+3}], s{sOFF} offen offset:{io} nt lds')
        else:
            dst = kslot(R, k) if isk else vslot(R, k)
            a(f'buffer_load_dwordx4 {dst}, v{vo}, s[{sr}:{sr+3}], s{sOFF} offen offset:{io} nt')
        vm.issue((tagb, n))

    def pace(tagb, n):
        def tg(m): return (tagb, m)
        if DL < D:
            m = n - DL
            t = (tagb, m) if m < 74 else (tagb + 1, m - 74)
            if t in vm.q:
                sk = L('pc')
                a(f's_cbranch_vccnz {sk}')
                keep = list(vm.q); vm.wait(t); vm.q = keep
                a.label(sk)
        vm.wait((tagb, n - D))
    def set_mode():
        a(f's_cmp_lg_u32 s{sALT}, 0')
        a('s_cselect_b64 vcc, -1, 0')

    def local_or(fn, fl_local, fl_far):
        if fl_local == fl_far:
            fn(fl_far); return
        nl, dn = L('nl'), L('dn')
        a(f's_cmp_eq_u32 s{sLOCAL}, 0'); a(f's_cbranch_scc1 {nl}')
        fn(fl_local); a(f's_branch {dn}')
        a.label(nl); fn(fl_far); a.label(dn)

    def qload(sreg, tag, dual=False):
        fn = lambda fl: a(f'buffer_load_dwordx4 {vr(vQ,4)}, v{vQOFF}, s[{S_WS}:{S_WS+3}], s{sreg} offen {fl}')
        if dual: local_or(fn, lpoll, 'sc1')
        else: fn('sc1')
        if tag: vm.issue(tag)

    def qcheck():
        a(f'v_max3_u32 v{vT0}, v{vQ}, v{vQ+1}, v{vQ+2}')
        a(f'v_max_u32 v{vT0}, v{vT0}, v{vQ+3}')
        a(f'v_cmp_eq_u32 vcc, -1, v{vT0}')

    sPF, sPFE = 86, 87
    def kprefetch():
        a(f'v_lshl_add_u32 v{vT1}, v{vVOFF}, 3, s{sPF}')
        a(f's_add_u32 s{sPF}, s{sPF}, {PFL*128}')
        if PFL < 64: a(f's_mov_b64 exec, {hex((1 << PFL) - 1)}')
        a(f'buffer_load_dword v{vP1}, v{vT1}, s[{S_K}:{S_K+3}], 0 offen')
        if PFL < 64: a('s_mov_b64 exec, -1')

    def qwait_blocking(sreg, first_loaded, pf=False):
        lp, ok, chk = L('qw'), L('qok'), L('qchk')
        if first_loaded:
            a(f's_branch {chk}')
        a.label(lp)
        spin_dec()
        if pf:
            a(f's_cmp_ge_u32 s{sPF}, s{sPFE}'); a(f's_cbranch_scc1 {ok}')
            kprefetch()
            a.label(ok)
        qload(sreg, None, dual=(sreg == sQ2))
        a('s_waitcnt vmcnt(0)')
        a.label(chk)
        qcheck()
        a(f's_cbranch_vccnz {lp}')

    def build_bq():
        for t in range(4):
            for r in range(4):
                a(f'v_cndmask_b32 v{vBQ+4*t+r}, 0, v{vQ+r}, s[{sMT+2*t}:{sMT+2*t+1}]')

    def qk_mfma(R, k, Q):
        t = TAU[k % 4]
        c = '0' if k % 4 == 0 else vr(Q, 4)
        return f'v_mfma_f32_16x16x32_bf16 {vr(Q,4)}, {kslot(R,k)}, {vr(vBQ+4*t,4)}, {c}'

    def diag_ops(S, Q):
        return [f'v_mov_b32_dpp v{S}, v{Q} quad_perm:[0,0,0,0] {DPPF}',
                f'v_add_f32_dpp v{S}, v{Q+1}, v{S} quad_perm:[1,1,1,1] {DPPF}',
                f'v_add_f32_dpp v{S}, v{Q+2}, v{S} quad_perm:[2,2,2,2] {DPPF}',
                f'v_add_f32_dpp v{S}, v{Q+3}, v{S} quad_perm:[3,3,3,3] {DPPF}']
    def kill_ops(S):
        return [f's_mov_b64 exec, s[{sTAIL}:{sTAIL+1}]', f'v_mov_b32 v{S}, 0xff800000', 's_mov_b64 exec, -1']
    def round_ops(Sa, Sb, u):
        return [f'v_cvt_pk_bf16_f32 v{u}, v{Sa}, v{Sb}', f'v_lshlrev_b32 v{Sa}, 16, v{u}', f'v_and_b32 v{Sb}, s{sHI}, v{u}',
                f'v_mul_f32 v{Sa}, s{sSCALE}, v{Sa}', f'v_mul_f32 v{Sb}, s{sSCALE}, v{Sb}',
                f'v_cvt_pk_bf16_f32 v{u}, v{Sa}, v{Sb}', f'v_lshlrev_b32 v{Sa}, 16, v{u}', f'v_and_b32 v{Sb}, s{sHI}, v{u}']

    def kphase_fast(R, order, S, u, hook=None):
        dq = []; rq = []
        done = []
        n = len(order)
        for idx in range(n + 2):
            if idx >= 2:
                c2 = order[idx-2]
                dq = diag_ops(S + c2, vQA + 4*((idx-2) % 3))
            ms = []
            if idx < n:
                c = order[idx]
                ms = [qk_mfma(R, 4*c + k, vQA + 4*(idx % 3)) for k in range(4 if c < 9 else 1)]
            for k in range(4):
                if k < len(ms): a(ms[k])
                if dq: a(dq.pop(0))
                if rq: a(rq.pop(0))
            if idx >= 2:
                c2 = order[idx-2]
                if c2 == 9:
                    for o in kill_ops(S + 9): a(o)
                done.append(c2)
                if len(done) == 2:
                    rq += round_ops(S + done[0], S + done[1], u); done = []
            if hook: hook(idx)
        for o in rq: a(o)

    def wave_reduce(op, v):
        a(f'{op}_dpp v{v}, v{v}, v{v} row_ror:4 {DPPF}')
        a(f'{op}_dpp v{v}, v{v}, v{v} row_ror:8 {DPPF}')
        a(f'{op}_dpp v{v}, v{v}, v{v} row_bcast:15 row_mask:0xa bank_mask:0xf')
        a(f'{op}_dpp v{v}, v{v}, v{v} row_bcast:31 row_mask:0xc bank_mask:0xf')

    def max_phase(S, nmc, t2):
        a(f'v_max3_f32 v{nmc}, v{S}, v{S+1}, v{S+2}')
        a(f'v_max3_f32 v{t2}, v{S+3}, v{S+4}, v{S+5}')
        a(f'v_max3_f32 v{nmc}, v{nmc}, v{S+6}, v{S+7}')
        a(f'v_max3_f32 v{t2}, v{t2}, v{S+8}, v{S+9}')
        a(f'v_max_f32 v{nmc}, v{nmc}, v{t2}')
        wave_reduce('v_max_f32', nmc)
        a(f'v_mul_f32 v{nmc}, {f32(-LOG2E)}, v{nmc}')
        a(f'v_readlane_b32 s56, v{nmc}, 63')
        a(f'v_mov_b32 v{nmc}, s56')

    def exp_ops(S, nmc, l, first):
        return [f'v_fmamk_f32 v{S}, v{S}, {f32(LOG2E)}, v{nmc}', f'v_exp_f32 v{S}, v{S}',
                (f'v_mov_b32 v{l}, v{S}' if first else f'v_add_f32 v{l}, v{l}, v{S}'),
                f'v_cvt_pk_bf16_f32 v{S}, v{S}, v{S}']

    def ml_write(nmc, si):
        wave_reduce('v_add_f32', nmc + 1)
        a(f'v_mov_b32 v{vT0}, s{sW8}')
        a('s_mov_b32 exec_lo, 0'); a('s_mov_b32 exec_hi, 0x80000000')
        a(f'ds_write_b64 v{vT0}, {vr(nmc,2)} offset:{8192 + si*32}')
        a('s_mov_b64 exec, -1')

    def and_ops(B, p, pair):
        ops = []
        for r in range(4):
            mirrored = (r >= 2) if pair == 0 else (r < 2)
            if mirrored: ops.append(f'v_and_b32_dpp v{B+r}, v{p}, v{vMASK+r} row_half_mirror {DPPF}')
            else: ops.append(f'v_and_b32 v{B+r}, v{p}, v{vMASK+r}')
        return ops

    def pv_mfma(src, B, Dacc, first):
        return f'v_mfma_f32_16x16x32_bf16 {vr(Dacc,4)}, {src}, {vr(B,4)}, {"0" if first else vr(Dacc,4)}'

    def publish(D0, si, sPUB):
        D1 = D0 + 4
        X = vQA
        a(f'v_lshrrev_b32 v{vT0}, 1, v{vVOFF}')
        a(f'v_add_u32 v{vT1}, s{sW512}, v{vT0}')
        a(f'v_mov_b32 v{X+2}, 1')
        a(f'v_mov_b32 v{X+3}, 0')
        a(f'v_add_f32_dpp v{X}, v{D1}, v{D0} row_ror:8 row_mask:0xf bank_mask:0x3')
        a(f'v_add_f32_dpp v{X+1}, v{D1+1}, v{D0+1} row_ror:8 row_mask:0xf bank_mask:0x3')
        a(f'v_add_f32_dpp v{X}, v{D0+2}, v{D1+2} row_ror:8 row_mask:0xf bank_mask:0xc')
        a(f'v_add_f32_dpp v{X+1}, v{D0+3}, v{D1+3} row_ror:8 row_mask:0xf bank_mask:0xc')
        a(f'ds_write_b64 v{vT1}, {vr(X,2)} offset:{si*2048}')
        a('s_mov_b64 exec, 1')
        a(f'ds_add_rtn_u32 v{X+2}, v{X+3}, v{X+2} offset:{8320 + si*4}')
        a('s_mov_b64 exec, -1')
        a('s_waitcnt lgkmcnt(0)')
        a(f'v_readfirstlane_b32 s56, v{X+2}')
        done = L('pubdone')
        a('s_and_b32 s56, s56, 3')
        a('s_cmp_lg_u32 s56, 3')
        a(f's_cbranch_scc1 {done}')
        T = vBQ
        a(f'ds_read_b128 {vr(T,4)}, v{X+3} offset:{8192 + si*32}')
        a(f'ds_read_b128 {vr(T+4,4)}, v{X+3} offset:{8192 + si*32 + 16}')
        for w in range(4):
            a(f'ds_read_b64 {vr(T+8+2*w,2)}, v{vT0} offset:{si*2048 + w*512}')
        a('s_waitcnt lgkmcnt(4)')
        M = X + 4
        a(f'v_min3_f32 v{M}, v{T}, v{T+2}, v{T+4}')
        a(f'v_min_f32 v{M}, v{M}, v{T+6}')
        for w in range(4): a(f'v_sub_f32 v{T+2*w}, v{M}, v{T+2*w}')
        for w in range(4): a(f'v_exp_f32 v{T+2*w}, v{T+2*w}')
        a('s_waitcnt lgkmcnt(0)')
        a(f'v_mul_f32 v{X}, v{T}, v{T+8}')
        a(f'v_mul_f32 v{X+1}, v{T}, v{T+9}')
        for w in range(1, 4):
            a(f'v_fmac_f32 v{X}, v{T+2*w}, v{T+8+2*w}')
            a(f'v_fmac_f32 v{X+1}, v{T+2*w}, v{T+9+2*w}')
        a(f'v_mul_f32 v{M+1}, v{T}, v{T+1}')
        for w in range(1, 4):
            a(f'v_fmac_f32 v{M+1}, v{T+2*w}, v{T+1+2*w}')
        a(f's_add_u32 s56, s{sPUB}, s{sML}')
        nl = L('pubnl')
        a(f's_cmp_eq_u32 s{sLOCAL}, 0')
        a(f's_cbranch_scc1 {nl}')
        a(f'buffer_store_dwordx2 {vr(X,2)}, v{vT0}, s[{S_WS}:{S_WS+3}], s{sPUB} offen')
        a('s_mov_b64 exec, 1')
        a(f'buffer_store_dwordx2 {vr(M,2)}, off, s[{S_WS}:{S_WS+3}], s56')
        a('s_mov_b64 exec, -1')
        a(f's_branch {done}')
        a.label(nl)
        a(f'buffer_store_dwordx2 {vr(X,2)}, v{vT0}, s[{S_WS}:{S_WS+3}], s{sPUB} offen sc1')
        a('s_mov_b64 exec, 1')
        a(f'buffer_store_dwordx2 {vr(M,2)}, off, s[{S_WS}:{S_WS+3}], s56 sc1')
        a('s_mov_b64 exec, -1')
        a.label(done)

    def arm(slots, wave):
        sk = L('arm')
        a(f's_cmp_lg_u32 s{sW}, {wave}'); a(f's_cbranch_scc1 {sk}')
        a(f'v_mov_b32 v{vQA+8}, -1'); a(f'v_mov_b32 v{vQA+9}, -1')
        a(f'v_lshrrev_b32 v{vT0}, 1, v{vVOFF}')
        def st(fl):
            for (sreg, add) in slots:
                a(f's_add_u32 s56, s{sreg}, {add}')
                a(f'buffer_store_dwordx2 {vr(vQA+8,2)}, v{vT0}, s[{S_WS}:{S_WS+3}], s56 offen {fl}')
                a(f's_add_u32 s56, s56, s{sML}')
                a('s_mov_b64 exec, 1')
                a(f'buffer_store_dwordx2 {vr(vQA+8,2)}, off, s[{S_WS}:{S_WS+3}], s56 {fl}')
                a('s_mov_b64 exec, -1')
        local_or(st, '', 'sc1')
        a.label(sk)

    def compute1(R, ci):
        if ci < 37:
            k = ci; c = k // 4
            a(qk_mfma(R, k, vQA))
            if k % 4 == 3 or k == 36:
                for o in diag_ops(vP1 + c, vQA): a(o)
                if c == 9:
                    for o in kill_ops(vP1 + 9): a(o)
                if c % 2 == 1:
                    for o in round_ops(vP1 + c - 1, vP1 + c, vT0): a(o)
            if k == 36:
                softmax1(R)
        else:
            k = ci - 37; c = k // 4
            if k % 2 == 0:
                if v_in_lds(k):
                    a(f'ds_read_b128 {vr(vBQ,4)}, v{vLDS} offset:{lds_off(R,k)}')
                for o in and_ops(vB1, vP1 + c, (k % 4) // 2): a(o)
                if v_in_lds(k):
                    a('s_waitcnt lgkmcnt(0)')
                    a(pv_mfma(vr(vBQ,4), vB1, vD1, k == 0))
                else:
                    a(pv_mfma(vslot(R,k), vB1, vD1, False))
            else:
                a(pv_mfma(vslot(R,k), vB1, vD1 + 4, k == 1))

    def softmax1(R):
        nmc = vQA + 4
        max_phase(vP1, nmc, vQA + 6)
        ops = [exp_ops(vP1 + c, nmc, nmc + 1, c == 0) for c in range(10)]
        for st in range(4):
            for c in range(10): a(ops[c][st])
        ml_write(nmc, R)

    a(f's_sub_u32 s57, s{sT}, 4')
    a('s_mul_i32 s58, s57, 37')
    a('s_lshr_b32 s58, s58, 8')
    a('s_mul_i32 s59, s58, 7')
    a('s_sub_u32 s59, s57, s59')
    a(f's_lshl_b32 s60, s{sX}, 2')
    a('s_add_u32 s60, s60, s58')
    a('s_lshl_b32 s61, s59, 2')
    a(f's_add_u32 s61, s61, s{sW}')
    a('s_mul_i32 s62, s61, 9363')
    a('s_add_u32 s63, s62, 9363')
    a('s_lshr_b32 s62, s62, 8')
    a('s_lshr_b32 s63, s63, 8')
    a('s_sub_u32 s63, s63, s62')
    a(f's_lshl_b32 s{sBASE}, s60, 20')
    a('s_lshl_b32 s62, s62, 10')
    a(f's_add_u32 s{sBASE}, s{sBASE}, s62')
    a(f'v_lshlrev_b32 v{vVOFF}, 4, v0')
    a(f'v_and_b32 v{vQOFF}, 3, v0')
    a(f'v_lshlrev_b32 v{vQOFF}, 4, v{vQOFF}')
    a(f'v_lshrrev_b32 v{vT1}, 4, v0')
    a(f'v_lshl_add_u32 v{vQOFF}, v{vT1}, 6, v{vQOFF}')
    a(f'v_bfe_u32 v{vT1}, v0, 2, 2')
    a(f'v_lshl_add_u32 v{vKOFF}, v{vT1}, 8, v{vQOFF}')
    a(f's_mul_i32 s{sLDS}, s{sW}, 36864')
    vm.reset([])
    if wpf:
        a('s_load_dwordx2 s[76:77], s[0:1], 24')
        a('s_load_dwordx4 s[80:83], s[0:1], 48')
        a('s_lshl_b32 s72, s57, 2'); a(f's_add_u32 s72, s72, s{sW}')
        a('s_mul_i32 s73, s72, 37'); a(f'v_add_u32 v{vBQ}, s73, v0')
        a(f'v_lshrrev_b32 v{vBQ+3}, 3, v{vBQ}'); a(f'v_lshlrev_b32 v{vBQ+3}, 13, v{vBQ+3}')
        a(f'v_and_b32 v{vBQ+4}, 7, v{vBQ}'); a(f'v_lshl_add_u32 v{vBQ+3}, v{vBQ+4}, 7, v{vBQ+3}')
        a(f's_lshl_b32 s73, s{sX}, 10'); a(f'v_add_u32 v{vBQ+3}, s73, v{vBQ+3}')
    a('s_waitcnt lgkmcnt(0)')
    if wpf & 1:
        srd(S_V, 76, 77, '0x400000')
        a('s_mov_b32 exec_hi, 31')
        a(f'buffer_load_dword v{vBQ+8}, v{vBQ+3}, s[{S_V}:{S_V+3}], 0 offen'); vm.issue('pf')
        a('s_mov_b64 exec, -1')
    srd(S_K, 64, 65, '0x10000000')
    soff_known[0] = None
    DI = min(D0, DL) if N0 else DL
    for n in range(DI): load(n, 0, 0)
    srd(S_V, 66, 67, '0x10000000')
    a('s_cmp_eq_u32 s63, 37')
    a('s_cselect_b32 s57, 0x10000000, 0')
    srd(S_KL, 64, 65, 's57'); srd(S_VL, 66, 67, 's57')
    a(f's_cselect_b32 s{sTAIL}, 0xfff0fff0, -1')
    a(f's_mov_b32 s{sTAIL+1}, s{sTAIL}')
    srd(S_WS, 70, 71, hex(WS_BYTES)); srd(S_DBG, 68, 69, '256')
    stamp(0, vt=vT1)
    for t in range(4):
        a(f's_mov_b32 s{sMT+2*t}, {hex(0x000f000f << (4*t))}')
        a(f's_mov_b32 s{sMT+2*t+1}, {hex(0x000f000f << (4*t))}')
    a(f'v_add_u32 v{vLDS}, s{sLDS}, v{vVOFF}')
    a(f'v_add_u32 v{vLDS}, {RING}, v{vLDS}')
    a(f'v_and_b32 v{vT1}, 1, v0')
    a(f'v_lshlrev_b32 v{vT1}, 4, v{vT1}')
    a(f'v_mov_b32 v{vQA}, 0xffff')
    a(f'v_lshlrev_b32 v{vT1}, v{vT1}, v{vQA}')
    a(f'v_bfe_u32 v{vQA}, v0, 1, 2')
    for r in range(4):
        a(f'v_cmp_eq_u32 vcc, {r}, v{vQA}')
        a(f'v_cndmask_b32 v{vMASK+r}, 0, v{vT1}, vcc')
    a(f's_lshl_b32 s{sW512}, s{sW}, 9')
    a(f's_lshl_b32 s{sW8}, s{sW}, 3')
    a('s_lshl_b32 s57, s60, 12')
    a('s_lshl_b32 s58, s59, 9')
    a(f's_add_u32 s{sPUB1}, s57, s58')
    a(f's_add_u32 s{sPUB2}, s{sPUB1}, {8*131072}')
    a(f's_lshl_b32 s{sML}, s59, 3')
    a(f's_sub_u32 s{sML}, s{sML}, s58')
    a(f's_add_u32 s{sML}, s{sML}, 3584')
    a(f's_lshl_b32 s{sQ1}, s60, 8')
    a(f's_add_u32 s{sQ1}, s{sQ1}, {QB}')
    a(f's_add_u32 s{sQ2}, s{sQ1}, {8*8192}')
    a(f's_mov_b32 s{sB}, 0')
    a(f's_mov_b32 s{sLOCAL}, 0')
    a(f's_mov_b32 s{sALT}, 0')
    a(f's_mov_b32 s{sP2D}, 0')
    if wpf:
        a('s_mul_i32 s73, s72, 19'); a(f'v_add_u32 v{vBQ+1}, s73, v0')
        a(f'v_lshrrev_b32 v{vBQ+4}, 2, v{vBQ+1}'); a(f'v_mul_u32_u24 v{vBQ+4}, 2752, v{vBQ+4}')
        a(f'v_and_b32 v{vBQ+1}, 3, v{vBQ+1}'); a(f'v_lshlrev_b32 v{vBQ+1}, 7, v{vBQ+1}'); a(f'v_min_u32 v{vBQ+1}, 380, v{vBQ+1}')
        a(f's_mul_i32 s73, s{sX}, 384'); a(f'v_add3_u32 v{vBQ+1}, v{vBQ+1}, v{vBQ+4}, s73')
        srd(72, 80, 81, hex(512*2752)); srd(76, 82, 83, hex(512*2752))
    if cpf:
        a('s_getpc_b64 s[86:87]')
        a.label('Lpc')
        a(f's_sub_u32 s86, s86, Lpc-{NAME}_kernel'); a('s_subb_u32 s87, s87, 0')
        a(f's_sub_u32 s88, s{sT}, 4'); a('s_lshl_b32 s88, s88, 2'); a(f's_add_u32 s88, s88, s{sW}'); a('s_lshl_b32 s88, s88, 10')
        a(f'v_lshl_add_u32 v{vBQ+5}, v0, 7, s88')
        a(f'v_cmp_gt_u32 vcc, Lend2-{NAME}_kernel, v{vBQ+5}')
        a('s_and_b64 exec, vcc, 0xff')
        sk = L('cpf')
        a(f's_cbranch_execz {sk}')
        a(f'global_load_dword v{vBQ+8}, v{vBQ+5}, s[86:87]')
        a.label(sk)
        a('s_mov_b64 exec, -1')
    a(f'v_mov_b32 v{vQA}, -1'); a(f'v_mov_b32 v{vQA+1}, -1')
    a(f'v_lshrrev_b32 v{vT1}, 1, v{vVOFF}')
    a(f's_lshl_b32 s57, s{sW}, 7')
    a(f's_add_u32 s57, s57, s{sPUB1}')
    a('s_mov_b64 exec, 0xffff')
    a(f'buffer_store_dwordx2 {vr(vQA,2)}, v{vT1}, s[{S_WS}:{S_WS+3}], s57 offen sc1'); vm.issue('init')
    a(f's_add_u32 s57, s{sPUB1}, s{sML}')
    a('s_mov_b64 exec, 1')
    a(f'buffer_store_dwordx2 {vr(vQA,2)}, off, s[{S_WS}:{S_WS+3}], s57 sc1'); vm.issue('init')
    a('s_mov_b64 exec, 15')
    a(f'v_lshlrev_b32 v{vT1}, 2, v0')
    a(f'v_mov_b32 v{vQA+2}, 0')
    a(f'ds_write_b32 v{vT1}, v{vQA+2} offset:8320')
    a('s_mov_b64 exec, -1')

    assert NQ >= 37 and NF >= 2*D + 2 and NQ >= NF + DL
    def pro_step(n):
        if n == 74:
            a(f's_add_u32 s{sBASE}, s{sBASE}, 0x2000000'); soff_known[0] = None
            a(f's_add_u32 s{sQ1}, s{sQ1}, 8192')
            qload(sQ1, 'q1')
        if n < N0: vm.wait((0, n - D0))
        pace(0, n)
        if n < 74: load(n, 0, 0)
        else: load(n - 74, 1, 1)
    set_mode()
    for n in range(DI, NQ + DL):
        if n == NF:
            a(f's_lshl_b32 s57, s{sX}, 5')
            a(f'buffer_load_dword v{vQ}, off, s[{S_DBG}:{S_DBG+3}], s57 sc1'); vm.issue('flag')
        if n == NF + DL:
            vm.wait('flag')
            lp, chk = L('fl'), L('flc')
            a(f's_branch {chk}')
            a.label(lp)
            spin_dec()
            a('s_sleep 4')
            a(f'buffer_load_dword v{vQ}, off, s[{S_DBG}:{S_DBG+3}], s57 sc1')
            a('s_waitcnt vmcnt(0)')
            a.label(chk)
            a(f'v_readfirstlane_b32 s58, v{vQ}')
            a('s_and_b32 s59, s58, 63')
            a('s_cmp_lg_u32 s59, 32')
            a(f's_cbranch_scc1 {lp}')
            a(f's_lshl_b32 s59, s{sVAL}, 5')
            a('s_cmp_eq_u32 s58, s59')
            a(f's_cselect_b32 s{sLOCAL}, {0 if force_nonlocal else 1}, 0')
            stamp(1, vt=vT1)
            arm([(sPUB1, 0), (sPUB1, 131072)], 0); arm([(sPUB1, 8*131072)], 1)
        if n == NQ:
            qload(sQ1, 'q1')
        pro_step(n)
        if n in (16, 32, 44): stamp({16: 5, 32: 6, 44: 7}[n], vt=vT1)
        if (wpf & 2) and n in (D + 4, D + 8):
            sr = 72 if n == D + 4 else 76
            a('s_mov_b64 exec, 0x7ffff')
            a(f'buffer_load_dword v{vBQ+8}, v{vBQ+1}, s[{sr}:{sr+3}], 0 offen'); vm.issue('pf')
            a('s_mov_b64 exec, -1')
        if n == 2*D + 1:
            assert 'init' not in vm.q
            a('s_waitcnt lgkmcnt(0)')
            a('s_barrier')
            sk = L('noat')
            a(f's_cmp_lg_u32 s{sW}, 0')
            a(f's_cbranch_scc1 {sk}')
            a(f's_lshl_b32 s57, s{sX}, 5')
            a(f'v_mov_b32 v{vT1}, s{sVAL}')
            a('s_mov_b64 exec, 1')
            a(f'buffer_atomic_add v{vT1}, off, s[{S_DBG}:{S_DBG+3}], s57 sc1')
            a('s_mov_b64 exec, -1')
            a.label(sk)
    vm.wait('q1')
    qwait_blocking(sQ1, True)
    stamp(2, vt=vT1)
    set_mode()
    build_bq()
    nn = [NQ + DL]
    def pro_hook(idx):
        if idx % 3 == 2:
            pro_step(nn[0]); nn[0] += 1
    kphase_fast(0, list(range(10)), vP1, vT0, pro_hook)
    softmax1(0)
    ci = 37
    for n in range(nn[0], 74 + D):
        pro_step(n)
        for _ in range(3):
            if ci <= n - D:
                compute1(0, ci); ci += 1
    assert ci == 74
    publish(vD1, 0, sPUB1)
    stamp((sB, 4, 8), vt=vT1)
    a(f's_add_u32 s{sPUB1}, s{sPUB1}, 131072')
    a(f's_mov_b32 s{sB}, 1')
    for n in range(D, D + NPB):
        pace(1, n); load(n, 1, 1)
    a('s_branch Lmainpost1')

    assert D + NPB <= 20
    class P2:
        def __init__(self, R):
            self.R = R
            base = 64 + 96*R
            self.S = base + 32; self.nmc = self.S + 10; self.u = self.S + 12; self.t2 = self.S + 13
            self.Dacc = base + 48; self.Bb = base + 56; self.TT = base + 64
        def rd(self, k):
            a(f'ds_read_b128 {vr(self.TT + 4*((k//2) % 8), 4)}, v{vLDS} offset:{lds_off(self.R,k)}')
        def first(self, hook=None):
            if stamps:
                a(f's_lshr_b32 s89, s{sPUB2}, 17'); a('s_sub_u32 s89, s89, 8')
            stamp((89, 4, 9), vt=vT1)
            build_bq()
            def hk(idx):
                if hook: hook(idx)
                if 6 <= idx < 10:
                    self.rd(4*(idx-6)); self.rd(4*(idx-6) + 2)
            kphase_fast(self.R, [5, 0, 1, 2, 7, 8, 6, 3, 4, 9], self.S, self.u, hk)
            a(f's_add_u32 s{sQ2}, s{sQ2}, 8192')
        def second(self, hook=None):
            R, S, nmc, Dacc, Bb, TT = self.R, self.S, self.nmc, self.Dacc, self.Bb, self.TT
            issued = list(range(0, 16, 2)); ldsq = list(range(16, 36, 2))
            max_phase(S, nmc, self.t2)
            for o in exp_ops(S, nmc, nmc + 1, True): a(o)
            eq = [o for c in range(1, 10) for o in exp_ops(S + c, nmc, nmc + 1, False)]
            for o in and_ops(Bb, S, 0): a(o)
            for m in range(19):
                B = Bb + 4*(m % 2); Bn = Bb + 4*((m+1) % 2)
                nxt = and_ops(Bn, S + (m+1)//2, (m+1) % 2) if m < 18 else []
                k0 = 2*m
                if hook: hook(m)
                if m % 2 == 0:
                    for _ in range(4):
                        if eq: a(eq.pop(0))
                if m < 18:
                    cnt = len(issued) - 1 - issued.index(k0)
                    a(f's_waitcnt lgkmcnt({cnt})')
                    a(pv_mfma(vr(TT + 4*(m % 8), 4), B, Dacc, m == 0))
                    a(nxt[0]); a(nxt[1])
                    a(pv_mfma(vslot(R, k0 + 1), B, Dacc + 4, m == 0))
                    a(nxt[2]); a(nxt[3])
                    if ldsq:
                        k = ldsq.pop(0); self.rd(k); issued.append(k)
                else:
                    a(pv_mfma(vslot(R, 36), B, Dacc, False))
            ml_write(nmc, 2 + R)
            if hook: hook(19)
            publish(Dacc, 2 + R, sPUB2)
            stamp((89, 4, 10), vt=vT1)
            a(f's_add_u32 s{sPUB2}, s{sPUB2}, 131072')

    def endp1(R):
        publish(vD1, R, sPUB1)
        stamp((sB, 4, 8), vt=vT1)
    def nextb():
        a(f's_add_u32 s{sPUB1}, s{sPUB1}, 131072')
        a(f's_add_u32 s{sB}, s{sB}, 1')

    def main(R):
        a.label(f'Lmain{R}')
        a.fence()
        vm.reset(['q1'] + [(0, n) for n in range(D)])
        soff_known[0] = None
        set_mode()
        nn = [D]
        pts = [round(i * 19 / (NPB - 1)) for i in range(NPB)]
        def hk2(m):
            if m in pts:
                pace(0, nn[0]); load(nn[0], R, 0); nn[0] += 1
        P2(R).second(hk2)
        assert nn[0] == D + NPB
        a.label(f'Lmainpost{R}')
        a.fence()
        soff_known[0] = None
        qwait_blocking(sQ1, True)
        set_mode()
        build_bq()
        arm([(sPUB1, 131072)], 2*R); arm([(sPUB1, 8*131072)], 2*R + 1)
        for ci in range(NPB): compute1(R, ci)
        for n in range(D + NPB, 74):
            pace(0, n)
            if n == 74 - DL: qload(sQ2, 'poll', dual=True)
            load(n, R, 0)
            compute1(R, n - D)
        a(f's_add_u32 s{sBASE}, s{sBASE}, 0x2000000'); soff_known[0] = None
        a(f's_add_u32 s{sQ1}, s{sQ1}, 8192')
        saved = list(vm.q)
        if R == 1:
            a(f's_cmp_eq_u32 s{sB}, 7')
            a(f's_cbranch_scc1 Lalt{R}')
        vm.wait('poll')
        qcheck()
        a(f's_cbranch_vccnz Lalt{R}')
        a(f's_mov_b32 s{sALT}, 1')
        nn = [74]
        def step():
            n = nn[0]; nn[0] += 1
            vm.wait((0, n - D)); load(n - 74, 1 - R, 1)
        def hkx(idx):
            if idx == 2:
                qload(sQ1, 'q1')
                for _ in range(D - DL): step()
            if idx in (2, 6, 10): step()
        P2(1 - R).first(hkx)
        for ci in range(74 - D, nn[0] - D): compute1(R, ci)
        while nn[0] < 74 + D:
            step(); compute1(R, nn[0] - 1 - D)
        endp1(R)
        nextb()
        a(f's_branch Lmain{1-R}')
        a.label(f'Lalt{R}')
        a.fence()
        vm.reset(saved); soff_known[0] = None
        if NPF:
            a(f's_mov_b32 s{sPF}, s{sBASE}'); a(f's_add_u32 s{sPFE}, s{sBASE}, {NPF*PFL*128}')
            qload(sQ2, 'poll2', dual=True)
        else:
            qload(sQ2, 'poll2', dual=True)
        for ci in range(74 - D, 74):
            vm.wait((0, ci))
            if NPF and ci == 74 - D//2:
                kprefetch(); vm.issue('kpf')
            compute1(R, ci)
        endp1(R)
        stamp((sB, 4, 11), vt=vT1)
        nextb()
        vm.wait('poll2')
        qwait_blocking(sQ2, True, pf=bool(NPF))
        if R == 1:
            a(f's_cmp_eq_u32 s{sB}, 8')
            a('s_cbranch_scc1 Lfin')
        a(f's_mov_b32 s{sALT}, 0')
        def hky(idx):
            if idx == 2:
                qload(sQ1, 'q1')
                for n in range(min(D, 8)): load(n, 1 - R, 1)
            if idx == 10:
                for n in range(8, D): load(n, 1 - R, 1)
        P2(1 - R).first(hky)
        a(f's_branch Lmain{1-R}')

    main(1)
    main(0)

    a.label('Lfin')
    a.fence()
    p = P2(0); p.first(); p.second()
    qwait_blocking(sQ2, False)
    p = P2(1); p.first(); p.second()
    a('s_branch Lend')

    from gen_chain import chain
    chain(a, locals())

    a.label('Lend')
    if stamps:
        a('s_mov_b64 exec, -1')
        a('v_mbcnt_lo_u32_b32 v0, -1, 0'); a('v_mbcnt_hi_u32_b32 v0, -1, v0')
        a('v_lshlrev_b32 v0, 4, v0'); a(f'v_add_u32 v1, s{sSTO}, v0')
        a('s_waitcnt lgkmcnt(0)')
        a('ds_read_b128 v[4:7], v1')
        a(f's_lshl_b32 s97, s2, 2'); a(f's_add_u32 s97, s97, s{sW}'); a('s_lshl_b32 s97, s97, 10'); a(f's_add_u32 s97, s97, {STAMP}')
        a('s_waitcnt lgkmcnt(0)')
        a(f'buffer_store_dwordx4 v[4:7], v0, s[{S_WS}:{S_WS+3}], s97 offen')
    a.label('Lend2')
    a('s_endpgm')
    a.raw('.section .rodata,"a"')
    a.raw('.p2align 6')
    a.raw(f'.amdhsa_kernel {NAME}_kernel')
    a.raw('  .amdhsa_next_free_vgpr 512')
    a.raw('  .amdhsa_next_free_sgpr 102')
    a.raw('  .amdhsa_accum_offset 256')
    a.raw('  .amdhsa_group_segment_fixed_size 0')
    a.raw('  .amdhsa_kernarg_size 96')
    a.raw('  .amdhsa_user_sgpr_count 2')
    a.raw('  .amdhsa_user_sgpr_kernarg_segment_ptr 1')
    a.raw('  .amdhsa_system_sgpr_workgroup_id_x 1')
    a.raw('  .amdhsa_float_denorm_mode_32 3')
    a.raw('.end_amdhsa_kernel')
    return a

if __name__ == '__main__':
    import argparse
    ap = argparse.ArgumentParser()
    ap.add_argument('-o', default=f'cdna_kernels/{NAME}.s')
    ap.add_argument('-D', type=int, default=8)
    ap.add_argument('--DL', type=int, default=8)
    ap.add_argument('--wpf', type=int, default=3)
    ap.add_argument('--NPF', type=int, default=0)
    ap.add_argument('--PFL', type=int, default=64)
    ap.add_argument('--D0', type=int, default=8)
    ap.add_argument('--N0', type=int, default=0)
    ap.add_argument('--nocpf', action='store_true')
    ap.add_argument('--stamps', action='store_true')
    ap.add_argument('--spin', type=int, default=SPIN)
    ap.add_argument('--nonlocal', dest='nl', action='store_true')
    ap.add_argument('--lpoll', default='sc1')
    ap.add_argument('--noptouch', action='store_true')
    args = ap.parse_args()
    a = gen(D=args.D, DL=args.DL, NPF=args.NPF, PFL=args.PFL, D0=args.D0, N0=args.N0, cpf=not args.nocpf, stamps=args.stamps, force_nonlocal=args.nl, spin=args.spin, lpoll=args.lpoll, wpf=args.wpf, ptouch=not args.noptouch)
    open(args.o, 'w').write(a.text())
    print('instrs', a.nins, 'auto nops', a.nnop, 'bytes', len(a.text()))
```
